```python
import torch

def _softmax(x, axis=-1):
    return torch.softmax(x, dim=axis)
def _gelu(x):
    return torch.nn.functional.gelu(x, approximate="tanh")
def _silu(x):
    return torch.nn.functional.silu(x)
def _sigmoid(x):
    return torch.sigmoid(x)
def _layernorm(x, axis=-1, eps=1e-5):
    m = x.mean(dim=axis, keepdim=True)
    v = x.var(dim=axis, keepdim=True, unbiased=False)
    return (x - m) / torch.sqrt(v + eps)
def _scatter_add(tgt, idx, src, axis=0):
    return tgt.clone().index_add_(axis, idx, src)
def _segment_sum(src, seg, n):
    out = torch.zeros((n,) + src.shape[1:], dtype=src.dtype)
    return out.index_add_(0, seg, src)
def _pad(x, pw):
    flat = tuple(v for pair in reversed(pw) for v in pair)
    return torch.nn.functional.pad(x, flat)

kernel_name = 'standalone__batchnorm__sampling'

def setup_inputs():

    _w = (lambda a: (lambda t: t.to(torch.bfloat16) if t.is_floating_point() else t)(torch.as_tensor(a)))
    B, S, C = 1024, 8, 640
    K = 3
    return {
        "x": _w((lambda *s: torch.randn(*s, dtype=torch.bfloat16) * 0.05)(B, S, C)),
        "w": _w((lambda *s: torch.randn(*s, dtype=torch.bfloat16) * 0.05)(K, C, C) * (1.0 / (K * C) ** 0.5)),
        "mean": _w((lambda *s: torch.randn(*s, dtype=torch.bfloat16) * 0.05)(C) * 0.1),
        "var": _w(torch.abs((lambda *s: torch.randn(*s, dtype=torch.bfloat16) * 0.05)(C)) + 0.5),
        "g": _w((lambda *s: torch.randn(*s, dtype=torch.bfloat16) * 0.05)(C) + 1.0),
        "b": _w((lambda *s: torch.randn(*s, dtype=torch.bfloat16) * 0.05)(C) * 0.1),
    }

def reference(x, w, mean, var, g, b):
    K = 3
    P = K // 2
    S = x.shape[1]
    xp = _pad(x, ((0, 0), (P, P), (0, 0)))
    y = sum(torch.einsum('bsc,cd->bsd', xp[:, k:k + S, :], w[k]) for k in range(K))
    inv_std = 1.0 / torch.sqrt(var + 1e-5)
    y = (y - mean) * (g * inv_std) + b
    return _silu(y)
```

```python
import sys, argparse

NAME = 'standalone__batchnorm__sampling_kernel'
HEADER = open('standalone__batchnorm__sampling.s.ref').read().split('; Override launch')[0]

XSLOT = 32768; NXS = 3
WBASE = XSLOT*NXS; WSLOT = 16384; NWS = 4
LDS_BYTES = WBASE + WSLOT*NWS
ORS = 176
NSTEP = 20

SETX = [0, 68]; SETW = [32, 100]
V_SC = 136; V_SH = 148
V_XA = [160, 161]; V_XB = [162, 163]; V_W = 164
V_T = 165
ACC = 176

class Gen:
    def __init__(self, opt):
        self.L = []; self.opt = opt
    def A(self, s): self.L.append('  ' + s)
    def lab(self, s): self.L.append(s + ':')
    def raw(self, s): self.L.append(s)

    def prologue(self):
        A = self.A; o = self.opt
        A('s_cmp_ge_u32 s2, 256'); A('s_cbranch_scc1 L_done')
        if o.stamp:
            A('s_memrealtime s[60:61]'); A('s_memtime s[64:65]')
        A('s_load_dwordx16 s[4:19], s[0:1], 0')
        if o.stamp: A('s_load_dwordx2 s[62:63], s[0:1], 64')
        A('v_lshrrev_b32 v1, 6, v0')
        A('v_and_b32 v0, 63, v0')
        A('s_and_b32 s20, s2, 7')
        A('v_readfirstlane_b32 s23, v1')
        A('s_lshr_b32 s21, s2, 3')
        A('s_lshr_b32 s22, s21, 3')
        A('s_and_b32 s21, s21, 7')
        A('s_lshl_b32 s20, s20, 2')
        A('s_add_u32 s20, s20, s22')
        if o.rot:
            A(f's_mul_i32 s24, s22, {o.rotm}')
            A(f's_mul_i32 s25, s21, {o.rotn}')
            A('s_add_u32 s24, s24, s25')
            A('s_mul_i32 s25, s24, 6554'); A('s_lshr_b32 s25, s25, 16'); A('s_mul_i32 s25, s25, 10'); A('s_sub_u32 s24, s24, s25')
        else:
            A('s_mov_b32 s24, 0')
        A('s_mul_i32 s26, s20, 327680')
        A('s_mul_i32 s27, s21, 160')
        A('s_cmp_ge_u32 s23, 4')
        A('s_cbranch_scc1 L_producer')

    def div10(self, vrow, vpiece, vsrc):
        A = self.A
        A(f'v_mul_u32_u24 v{vrow}, 6554, v{vsrc}')
        A(f'v_lshrrev_b32 v{vrow}, 16, v{vrow}')
        A(f'v_mul_u32_u24 v{vpiece}, 10, v{vrow}')
        A(f'v_sub_u32 v{vpiece}, v{vsrc}, v{vpiece}')

    def producer(self):
        A = self.A; o = self.opt
        self.lab('L_producer')
        A('s_sub_u32 s28, s23, 4')
        A('v_lshrrev_b32 v2, 3, v0')
        A('v_lshrrev_b32 v3, 4, v0')
        A('s_and_b32 s29, s28, 1'); A('s_lshl_b32 s29, s29, 2')
        A('v_add_u32 v3, s29, v3')
        A('v_and_b32 v4, 7, v0')
        A('v_xor_b32 v4, v4, v3')
        A('v_mul_u32_u24 v2, 10240, v2')
        A('v_lshl_add_u32 v10, v4, 4, v2')
        for j in range(4):
            A(f's_add_u32 s30, s28, {4*j}')
            A('s_mul_i32 s31, s30, 52'); A('s_lshr_b32 s31, s31, 8')
            A('s_mul_i32 s32, s31, 5'); A('s_sub_u32 s32, s30, s32')
            A('s_lshl_b32 s32, s32, 6')
            A('v_add_u32 v2, s32, v0')
            self.div10(3, 4, 2)
            A('v_bfe_u32 v5, v3, 2, 2'); A('v_lshlrev_b32 v5, 3, v5')
            A('v_lshrrev_b32 v6, 4, v3'); A('v_lshl_add_u32 v5, v6, 2, v5')
            A('v_and_b32 v6, 3, v3'); A('v_add_u32 v5, v5, v6')
            A('v_mul_u32_u24 v5, 1280, v5')
            A('v_lshl_add_u32 v5, v4, 4, v5')
            A('s_mul_i32 s31, s31, 819200')
            if j == 3:
                A('s_cmp_eq_u32 s30, 15'); A('s_cselect_b32 s31, 0x40000000, s31')
            A(f'v_add_u32 v{11+j}, s31, v5')
        A('s_waitcnt lgkmcnt(0)')
        A('s_mov_b32 s32, s4'); A('s_and_b32 s33, s5, 0xffff'); A(f's_mov_b32 s34, {1024*8*640*2}'); A('s_mov_b32 s35, 0x20000')
        A('s_mov_b32 s36, s6'); A('s_and_b32 s37, s7, 0xffff'); A(f's_mov_b32 s38, {3*640*640*2}'); A('s_mov_b32 s39, 0x20000')
        A('s_mul_i32 s40, s28, 81920'); A('s_add_u32 s40, s40, s26')
        A('s_lshl_b32 s41, s28, 10')
        A(f's_add_u32 s42, s41, {WBASE}')
        A('s_mov_b32 s43, s24'); A('s_mov_b32 s44, s24')
        issued = []
        xaux = o.xaux; waux = o.waux
        def adv(reg):
            A(f's_add_u32 s{reg}, s{reg}, 1'); A(f's_cmp_eq_u32 s{reg}, 10'); A(f's_cselect_b32 s{reg}, 0, s{reg}')
        def issue_x(X, svals):
            slot = X % NXS
            if svals[0] == 0:
                A('s_lshl_b32 s45, s43, 7'); A('s_add_u32 s45, s45, s40')
            for s in svals:
                A(f's_add_u32 m0, s41, {slot*XSLOT + s*4096}')
                A(f's_add_u32 s46, s45, {s*1280}')
                A(f'buffer_load_dwordx4 v10, s[32:35], s46 offen {xaux} lds')
                issued.append(('x', X))
            if svals[-1] == 7: adv(43)
        def issue_w(t):
            slot = t % NWS
            A('s_mul_i32 s47, s44, 81920'); A('s_add_u32 s47, s47, s27')
            if t & 1: A(f's_add_u32 s47, s47, {32*1280}')
            for j in range(4):
                A(f's_add_u32 m0, s42, {slot*WSLOT + j*4096}')
                A('s_nop 0')
                A(f'buffer_load_dwordx4 v{11+j}, s[36:39], s47 offen {waux} lds')
                issued.append(('w', t))
            if t & 1: adv(44)
        def need(step):
            req = [i for i, tg in enumerate(issued) if tg == ('x', step >> 1) or tg == ('w', step)]
            n = len(issued) - 1 - max(req)
            A(f's_waitcnt vmcnt({n})')
        issue_x(0, list(range(8))); issue_w(0); issue_w(1); issue_x(1, list(range(8))); issue_w(2); issue_w(3); issue_x(2, list(range(8)))
        need(0); A('s_barrier')
        need(1); A('s_barrier')
        for t in range(NSTEP):
            if t + 4 < NSTEP: issue_w(t + 4)
            if t >= 1:
                X = (t - 1) >> 1
                if X + 3 < 10:
                    issue_x(X + 3, [0, 1, 2, 3] if (t & 1) else [4, 5, 6, 7])
            if t + 1 < NSTEP:
                if t + 2 < NSTEP: need(t + 2)
                A('s_barrier')
        A('s_branch L_store')

    def mfma_list(self, hi):
        out = []
        for s_in in range(8):
            for k in range(3):
                s_out = s_in + 1 - k
                if not 0 <= s_out < 8: continue
                out.append((s_out, (k, 0), s_in))
                out.append((8 + s_out, (k, 1), s_in))
                if (not hi and s_out < 4): out.append((16 + s_out, (k, 2), s_in))
                if (hi and s_out >= 4): out.append((16 + s_out - 4, (k, 2), s_in))
        assert len(out) == 55
        return out
    def ncols(self, hi):
        return [3, 4, 2] if hi else [0, 1, 2]
    def reads(self, step, hi):
        st = step & 1
        xs = (step >> 1) % NXS; kk = step & 1; ws = step % NWS
        nc = self.ncols(hi)
        r = []
        xr = []
        for s in range(8):
            va = (V_XA if xs < 2 else V_XB)[kk]
            off = (xs % 2) * XSLOT * (1 if xs < 2 else 0) + s*4096
            d = SETX[st] + 4*s
            xr.append(f'ds_read_b128 v[{d}:{d+3}], v{va} offset:{off}')
        wr = []
        for k in range(3):
            for g in range(3):
                for u in range(2):
                    d = SETW[st] + (k*3 + g)*4 + 2*u
                    off = ws*WSLOT + k*5120 + u*2560 + nc[g]*32
                    wr.append(f'ds_read_b64_tr_b16 v[{d}:{d+1}], v{V_W} offset:{off}')
        while xr or wr:
            if wr: r.append(wr.pop(0))
            if wr: r.append(wr.pop(0))
            if xr: r.append(xr.pop(0))
        return r
    def consumer(self, hi):
        A = self.A; o = self.opt
        tag = 'hi' if hi else 'lo'
        self.lab(f'L_cons_{tag}')
        nc = self.ncols(hi)
        A('s_lshr_b32 s28, s23, 1')
        A('v_and_b32 v1, 15, v0')
        A('v_lshrrev_b32 v2, 4, v0')
        A('v_lshrrev_b32 v3, 1, v1')
        A('v_xor_b32 v3, v3, v2')
        A('v_lshlrev_b32 v3, 4, v3')
        A('v_lshl_add_u32 v3, v1, 7, v3')
        A('s_lshl_b32 s29, s28, 11')
        A(f'v_add_u32 v{V_XA[0]}, s29, v3')
        A(f'v_xor_b32 v{V_XA[1]}, 64, v{V_XA[0]}')
        A(f'v_add_u32 v{V_XB[0]}, 0x10000, v{V_XA[0]}')
        A(f'v_add_u32 v{V_XB[1]}, 0x10000, v{V_XA[1]}')
        A('v_lshrrev_b32 v3, 2, v1')
        A('v_lshl_add_u32 v3, v2, 2, v3')
        A('v_mul_u32_u24 v3, 160, v3')
        A('v_and_b32 v4, 3, v1')
        A('v_lshl_add_u32 v3, v4, 3, v3')
        A(f'v_add_u32 v{V_W}, {WBASE}, v3')
        A('s_lshl_b32 s29, s28, 4')
        A('v_add_u32 v3, s29, v1')
        A(f'v_mul_u32_u24 v3, {ORS}, v3')
        A(f'v_lshl_add_u32 v{V_T}, v2, 3, v3')
        A(f'v_lshlrev_b32 v3, 3, v2')
        A('v_add_u32 v3, s27, v3')
        A('s_waitcnt lgkmcnt(0)')
        for pi, sp in enumerate([8, 10, 12, 14]):
            for g in range(3):
                d = 68 + pi*6 + g*2
                A(f'global_load_dwordx2 v[{d}:{d+1}], v3, s[{sp}:{sp+1}] offset:{nc[g]*32}')
        A('s_waitcnt vmcnt(0)')
        A('s_mov_b32 s30, 0x3727c5ac')
        A('s_mov_b32 s31, 0xbfb8aa3b')
        for g in range(3):
            for j in range(4):
                def unp(dst, pi):
                    src = 68 + pi*6 + g*2 + (j >> 1)
                    if j & 1: A(f'v_and_b32 v{dst}, 0xffff0000, v{src}')
                    else: A(f'v_lshlrev_b32 v{dst}, 16, v{src}')
                unp(4, 0); unp(5, 1); unp(6, 2); unp(7, 3)
                sc = V_SC + g*4 + j; sh = V_SH + g*4 + j
                A('v_add_f32 v5, s30, v5')
                A('v_rsq_f32 v5, v5')
                A('s_nop 0')
                A('v_mul_f32 v6, v6, v5')
                A('v_fma_f32 v7, -v4, v6, v7')
                A(f'v_mul_f32 v{sc}, s31, v6')
                A(f'v_mul_f32 v{sh}, s31, v7')
        A('s_barrier')
        for r in self.reads(0, hi): A(r)
        A('s_waitcnt lgkmcnt(0)')
        A('s_barrier')
        ml = self.mfma_list(hi)
        for t in range(NSTEP):
            st = t & 1
            rd = self.reads(t + 1, hi) if t + 1 < NSTEP else []
            seen = set()
            ri = 0
            for mi, (blk, (k, g), s_in) in enumerate(ml):
                a = ACC + 4*blk
                w = SETW[st] + (k*3 + g)*4; x = SETX[st] + 4*s_in
                c = f'v[{a}:{a+3}]'
                if t == 0 and blk not in seen: c = '0'
                seen.add(blk)
                A(f'v_mfma_f32_16x16x32_bf16 v[{a}:{a+3}], v[{w}:{w+3}], v[{x}:{x+3}], {c}')
                due = (mi + 1) * len(rd) // o.rdspan if rd else 0
                while ri < min(due, len(rd)):
                    A(rd[ri]); ri += 1
            assert ri == len(rd)
            if t + 1 < NSTEP:
                A('s_waitcnt lgkmcnt(0)')
                A('s_barrier')
        A(f's_mov_b32 s30, 0xbfb8aa3b')
        A('v_mov_b32 v0, s30'); A('v_mov_b32 v1, s30')
        A('s_nop 7')
        blks = []
        for g in range(3):
            ss = range(8) if g < 2 else (range(4, 8) if hi else range(4))
            for si, s in enumerate(ss):
                blk = (g*8 + s) if g < 2 else 16 + si
                blks.append((blk, g, s))
        tb = 4
        for bi, (blk, g, s) in enumerate(blks):
            a = ACC + 4*blk; T = 4 + (bi % 8)*8
            sc = V_SC + 4*g; sh = V_SH + 4*g
            for p in (0, 2):
                A(f'v_pk_fma_f32 v[{T+p}:{T+p+1}], v[{a+p}:{a+p+1}], v[{sc+p}:{sc+p+1}], v[{sh+p}:{sh+p+1}]')
            for j in range(4): A(f'v_exp_f32 v{T+4+j}, v{T+j}')
            A('s_nop 0')
            for p in (0, 2):
                A(f'v_pk_fma_f32 v[{T+4+p}:{T+5+p}], v[{T+4+p}:{T+5+p}], v[0:1], v[0:1]')
            for j in range(4): A(f'v_rcp_f32 v{T+4+j}, v{T+4+j}')
            A('s_nop 0')
            for p in (0, 2):
                A(f'v_pk_mul_f32 v[{T+p}:{T+p+1}], v[{T+p}:{T+p+1}], v[{T+4+p}:{T+5+p}]')
            A(f'v_cvt_pk_bf16_f32 v{T+4}, v{T}, v{T+1}')
            A(f'v_cvt_pk_bf16_f32 v{T+5}, v{T+2}, v{T+3}')
            A(f'ds_write_b64 v{V_T}, v[{T+4}:{T+5}] offset:{s*32*ORS + nc[g]*32}')
        if hi: A('s_branch L_store')

    def store(self):
        A = self.A; o = self.opt
        self.lab('L_store')
        A('v_mbcnt_lo_u32_b32 v2, -1, 0'); A('v_mbcnt_hi_u32_b32 v2, -1, v2')
        A('s_mov_b32 s32, s16'); A('s_and_b32 s33, s17, 0xffff'); A(f's_mov_b32 s34, {1024*8*640*2}'); A('s_mov_b32 s35, 0x20000')
        A(f's_mul_i32 s36, s23, {32*ORS}')
        A('s_mul_i32 s37, s23, 1280'); A('s_add_u32 s37, s37, s26'); A('s_add_u32 s37, s37, s27')
        for j in range(5):
            A(f'v_add_u32 v3, {64*j}, v2')
            self.div10(4, 5, 3)
            A(f'v_mul_u32_u24 v6, {ORS}, v4')
            A(f'v_lshl_add_u32 v6, v5, 4, v6')
            A(f'v_add_u32 v{10+j}, s36, v6')
            A(f'v_mul_u32_u24 v6, 10240, v4')
            A(f'v_lshl_add_u32 v{16+j}, v5, 4, v6')
        A('s_waitcnt lgkmcnt(0)')
        A('s_barrier')
        for j in range(5): A(f'ds_read_b128 v[{24+4*j}:{27+4*j}], v{10+j}')
        for j in range(5):
            A(f's_waitcnt lgkmcnt({4-j})')
            A(f'buffer_store_dwordx4 v[{24+4*j}:{27+4*j}], v{16+j}, s[32:35], s37 offen {o.saux}')
        if o.stamp:
            A('s_waitcnt vmcnt(0)'); A('s_barrier')
            A('s_memrealtime s[66:67]'); A('s_memtime s[68:69]'); A('s_waitcnt lgkmcnt(0)'); A('s_sub_u32 s68, s68, s64')
            A('s_cmp_eq_u32 s23, 0'); A('s_cbranch_scc0 L_done')
            A('v_mov_b32 v20, s60'); A('v_mov_b32 v21, s61'); A('v_mov_b32 v22, s66'); A('v_mov_b32 v23, s67')
            A('s_lshl_b32 s44, s2, 4'); A('v_mov_b32 v24, s44')
            A('v_cmp_eq_u32 vcc, 0, v2'); A('s_and_saveexec_b64 s[46:47], vcc'); A('s_cbranch_execz L_done')
            A('global_store_dwordx4 v24, v[20:23], s[62:63]')
            A('v_mov_b32 v25, s68'); A('s_lshl_b32 s44, s2, 2'); A('s_add_u32 s44, s44, 65536'); A('v_mov_b32 v26, s44')
            A('global_store_dword v26, v25, s[62:63]')
        self.lab('L_done')
        A('s_endpgm')

    def build(self):
        o = self.opt
        R = self.raw
        R(HEADER.rstrip('\n'))
        R(f'; @launch grid=(256,1,1) block=(512,1,1) lds={LDS_BYTES}')
        R('.amdgcn_target "amdgcn-amd-amdhsa--gfx950"'); R('.text'); R(f'.globl {NAME}'); R('.p2align 8'); R(f'.type {NAME},@function')
        self.lab(NAME)
        self.prologue()
        self.A('s_and_b32 s29, s23, 1'); self.A('s_cmp_eq_u32 s29, 1'); self.A('s_cbranch_scc1 L_cons_hi')
        self.consumer(False)
        self.A('s_branch L_store')
        self.consumer(True)
        self.producer()
        self.store()
        R('.section .rodata,"a"'); R('.p2align 6'); R(f'.amdhsa_kernel {NAME}')
        R('  .amdhsa_next_free_vgpr 256'); R('  .amdhsa_next_free_sgpr 96'); R('  .amdhsa_accum_offset 256')
        R('  .amdhsa_group_segment_fixed_size 0'); R('  .amdhsa_kernarg_size 72'); R('  .amdhsa_user_sgpr_count 2')
        R('  .amdhsa_user_sgpr_kernarg_segment_ptr 1'); R('  .amdhsa_system_sgpr_workgroup_id_x 1'); R('.end_amdhsa_kernel')
        return '\n'.join(self.L) + '\n'

def parse(argv):
    p = argparse.ArgumentParser()
    p.add_argument('-o', default='standalone__batchnorm__sampling.s')
    p.add_argument('--stamp', type=int, default=0)
    p.add_argument('--rot', type=int, default=0)
    p.add_argument('--rotm', type=int, default=2)
    p.add_argument('--rotn', type=int, default=1)
    p.add_argument('--rdspan', type=int, default=48)
    p.add_argument('--xaux', default=''); p.add_argument('--waux', default=''); p.add_argument('--saux', default='')
    p.add_argument('--meta', type=int, default=0)
    return p.parse_args(argv)

META = '''.amdgpu_metadata
---
amdhsa.version: [1, 2]
amdhsa.kernels:
  - .name: {name}
    .symbol: {name}.kd
    .kernarg_segment_size: 72
    .kernarg_segment_align: 8
    .group_segment_fixed_size: 0
    .private_segment_fixed_size: 0
    .wavefront_size: 64
    .sgpr_count: 102
    .vgpr_count: 256
    .max_flat_workgroup_size: 512
    .args:
      - {{.name: kernargs, .size: 72, .offset: 0, .value_kind: by_value}}
...
.end_amdgpu_metadata
'''
if __name__ == '__main__':
    o = parse(sys.argv[1:])
    s = Gen(o).build()
    if o.meta: s += META.format(name=NAME)
    open(o.o, 'w').write(s)
```

```python
import sys, argparse

NAME = 'standalone__batchnorm__sampling_kernel'
HEADER = open('standalone__batchnorm__sampling.s.ref').read().split('; Override launch')[0]

XSLOT = 32768; NXS = 3
WBASE = XSLOT*NXS; WSLOT = 16384; NWS = 4
LDS_BYTES = WBASE + WSLOT*NWS
ORS = 176
NSTEP = 20

SETX = [0, 68]; SETW = [32, 100]
V_SC = 136; V_SH = 148
V_XA = [160, 161]; V_XB = [162, 163]; V_W = 164
V_T = 165
ACC = 176

class Gen:
    def __init__(self, opt):
        self.L = []; self.opt = opt
    def A(self, s): self.L.append('  ' + s)
    def lab(self, s): self.L.append(s + ':')
    def raw(self, s): self.L.append(s)

    def prologue(self):
        A = self.A; o = self.opt
        A('s_cmp_ge_u32 s2, 256'); A('s_cbranch_scc1 L_done')
        if o.stamp or o.dbg:
            A('s_memrealtime s[60:61]'); A('s_memtime s[64:65]')
        A('s_load_dwordx16 s[4:19], s[0:1], 0')
        if o.stamp: A('s_load_dwordx2 s[62:63], s[0:1], 64')
        A('v_lshrrev_b32 v1, 6, v0')
        A('v_and_b32 v0, 63, v0')
        A('s_and_b32 s20, s2, 7')
        A('v_readfirstlane_b32 s23, v1')
        A('s_lshr_b32 s21, s2, 3')
        A('s_lshr_b32 s22, s21, 3')
        A('s_and_b32 s21, s21, 7')
        A('s_lshl_b32 s20, s20, 2')
        A('s_add_u32 s20, s20, s22')
        if o.rot:
            A(f's_mul_i32 s24, s22, {o.rotm}')
            A(f's_mul_i32 s25, s21, {o.rotn}')
            A('s_add_u32 s24, s24, s25')
            A('s_mul_i32 s25, s24, 6554'); A('s_lshr_b32 s25, s25, 16'); A('s_mul_i32 s25, s25, 10'); A('s_sub_u32 s24, s24, s25')
        else:
            A('s_mov_b32 s24, 0')
        A('s_mul_i32 s26, s20, 327680')
        A('s_mul_i32 s27, s21, 160')
        A('s_cmp_ge_u32 s23, 4')
        A('s_cbranch_scc1 L_producer')

    def div10(self, vrow, vpiece, vsrc):
        A = self.A
        A(f'v_mul_u32_u24 v{vrow}, 6554, v{vsrc}')
        A(f'v_lshrrev_b32 v{vrow}, 16, v{vrow}')
        A(f'v_mul_u32_u24 v{vpiece}, 10, v{vrow}')
        A(f'v_sub_u32 v{vpiece}, v{vsrc}, v{vpiece}')

    def producer(self):
        A = self.A; o = self.opt
        self.lab('L_producer')
        A('s_sub_u32 s28, s23, 4')
        A('v_lshrrev_b32 v2, 3, v0')
        A('v_lshrrev_b32 v3, 4, v0')
        A('s_and_b32 s29, s28, 1'); A('s_lshl_b32 s29, s29, 2')
        A('v_add_u32 v3, s29, v3')
        A('v_and_b32 v4, 7, v0')
        A('v_xor_b32 v4, v4, v3')
        A('v_mul_u32_u24 v2, 10240, v2')
        A('v_lshl_add_u32 v10, v4, 4, v2')
        for j in range(4):
            A(f's_add_u32 s30, s28, {4*j}')
            A('s_mul_i32 s31, s30, 52'); A('s_lshr_b32 s31, s31, 8')
            A('s_mul_i32 s32, s31, 5'); A('s_sub_u32 s32, s30, s32')
            A('s_lshl_b32 s32, s32, 6')
            A('v_add_u32 v2, s32, v0')
            self.div10(3, 4, 2)
            A('v_bfe_u32 v5, v3, 2, 2'); A('v_lshlrev_b32 v5, 3, v5')
            A('v_lshrrev_b32 v6, 4, v3'); A('v_lshl_add_u32 v5, v6, 2, v5')
            A('v_and_b32 v6, 3, v3'); A('v_add_u32 v5, v5, v6')
            A('v_mul_u32_u24 v5, 1280, v5')
            A('v_lshl_add_u32 v5, v4, 4, v5')
            A('s_mul_i32 s31, s31, 819200')
            if j == 3:
                A('s_cmp_eq_u32 s30, 15'); A('s_cselect_b32 s31, 0x40000000, s31')
            A(f'v_add_u32 v{11+j}, s31, v5')
        A('s_waitcnt lgkmcnt(0)')
        A('s_mov_b32 s32, s4'); A('s_and_b32 s33, s5, 0xffff'); A(f's_mov_b32 s34, {1024*8*640*2}'); A('s_mov_b32 s35, 0x20000')
        A('s_mov_b32 s36, s6'); A('s_and_b32 s37, s7, 0xffff'); A(f's_mov_b32 s38, {3*640*640*2}'); A('s_mov_b32 s39, 0x20000')
        A('s_mul_i32 s40, s28, 81920'); A('s_add_u32 s40, s40, s26')
        A('s_lshl_b32 s41, s28, 10')
        A(f's_add_u32 s42, s41, {WBASE}')
        A('s_mov_b32 s43, s24'); A('s_mov_b32 s44, s24')
        issued = []
        xaux = o.xaux; waux = o.waux
        def adv(reg):
            A(f's_add_u32 s{reg}, s{reg}, 1'); A(f's_cmp_eq_u32 s{reg}, 10'); A(f's_cselect_b32 s{reg}, 0, s{reg}')
        def issue_x(X, svals):
            slot = X % NXS
            if svals[0] == 0:
                A('s_lshl_b32 s45, s43, 7'); A('s_add_u32 s45, s45, s40')
            for s in svals:
                A(f's_add_u32 m0, s41, {slot*XSLOT + s*4096}')
                A(f's_add_u32 s46, s45, {s*1280}')
                A(f'buffer_load_dwordx4 v10, s[32:35], s46 offen {xaux} lds')
                issued.append(('x', X))
            if svals[-1] == 7: adv(43)
        def issue_w(t):
            slot = t % NWS
            A('s_mul_i32 s47, s44, 81920'); A('s_add_u32 s47, s47, s27')
            if t & 1: A(f's_add_u32 s47, s47, {32*1280}')
            for j in range(4):
                A(f's_add_u32 m0, s42, {slot*WSLOT + j*4096}')
                A('s_nop 0')
                A(f'buffer_load_dwordx4 v{11+j}, s[36:39], s47 offen {waux} lds')
                issued.append(('w', t))
            if t & 1: adv(44)
        def need(step):
            req = [i for i, tg in enumerate(issued) if tg == ('x', step >> 1) or tg == ('w', step)]
            n = len(issued) - 1 - max(req)
            A(f's_waitcnt vmcnt({n})')
        issue_x(0, list(range(8))); issue_w(0); issue_w(1); issue_x(1, list(range(8))); issue_w(2); issue_w(3); issue_x(2, list(range(8)))
        need(0); A('s_barrier')
        need(1); A('s_barrier')
        for t in range(NSTEP):
            if t + 4 < NSTEP: issue_w(t + 4)
            if t >= 1:
                X = (t - 1) >> 1
                if X + 3 < 10:
                    issue_x(X + 3, [0, 1, 2, 3] if (t & 1) else [4, 5, 6, 7])
            if t + 1 < NSTEP:
                if t + 2 < NSTEP: need(t + 2)
                A('s_barrier')
        A('s_branch L_store')

    def mfma_list(self, hi):
        out = []
        for s_in in range(8):
            for k in range(3):
                s_out = s_in + 1 - k
                if not 0 <= s_out < 8: continue
                out.append((s_out, (k, 0), s_in))
                out.append((8 + s_out, (k, 1), s_in))
                if (not hi and s_out < 4): out.append((16 + s_out, (k, 2), s_in))
                if (hi and s_out >= 4): out.append((16 + s_out - 4, (k, 2), s_in))
        assert len(out) == 55
        return out
    def ncols(self, hi):
        return [3, 4, 2] if hi else [0, 1, 2]
    def reads(self, step, hi):
        st = step & 1
        xs = (step >> 1) % NXS; kk = step & 1; ws = step % NWS
        nc = self.ncols(hi)
        r = []
        xr = []
        for s in range(8):
            va = (V_XA if xs < 2 else V_XB)[kk]
            off = (xs % 2) * XSLOT * (1 if xs < 2 else 0) + s*4096
            d = SETX[st] + 4*s
            xr.append(f'ds_read_b128 v[{d}:{d+3}], v{va} offset:{off}')
        wr = []
        for k in range(3):
            for g in range(3):
                for u in range(2):
                    d = SETW[st] + (k*3 + g)*4 + 2*u
                    off = ws*WSLOT + k*5120 + u*2560 + nc[g]*32
                    wr.append(f'ds_read_b64_tr_b16 v[{d}:{d+1}], v{V_W} offset:{off}')
        while xr or wr:
            if wr: r.append(wr.pop(0))
            if wr: r.append(wr.pop(0))
            if xr: r.append(xr.pop(0))
        return r
    def consumer(self, hi):
        A = self.A; o = self.opt
        tag = 'hi' if hi else 'lo'
        self.lab(f'L_cons_{tag}')
        nc = self.ncols(hi)
        A('s_lshr_b32 s28, s23, 1')
        A('v_and_b32 v1, 15, v0')
        A('v_lshrrev_b32 v2, 4, v0')
        A('v_lshrrev_b32 v3, 1, v1')
        A('v_xor_b32 v3, v3, v2')
        A('v_lshlrev_b32 v3, 4, v3')
        A('v_lshl_add_u32 v3, v1, 7, v3')
        A('s_lshl_b32 s29, s28, 11')
        A(f'v_add_u32 v{V_XA[0]}, s29, v3')
        A(f'v_xor_b32 v{V_XA[1]}, 64, v{V_XA[0]}')
        A(f'v_add_u32 v{V_XB[0]}, 0x10000, v{V_XA[0]}')
        A(f'v_add_u32 v{V_XB[1]}, 0x10000, v{V_XA[1]}')
        A('v_lshrrev_b32 v3, 2, v1')
        A('v_lshl_add_u32 v3, v2, 2, v3')
        A('v_mul_u32_u24 v3, 160, v3')
        A('v_and_b32 v4, 3, v1')
        A('v_lshl_add_u32 v3, v4, 3, v3')
        A(f'v_add_u32 v{V_W}, {WBASE}, v3')
        A('s_lshl_b32 s29, s28, 4')
        A('v_add_u32 v3, s29, v1')
        A(f'v_mul_u32_u24 v3, {ORS}, v3')
        A(f'v_lshl_add_u32 v{V_T}, v2, 3, v3')
        A(f'v_lshlrev_b32 v3, 3, v2')
        A('v_add_u32 v3, s27, v3')
        A('s_waitcnt lgkmcnt(0)')
        for pi, sp in enumerate([8, 10, 12, 14]):
            for g in range(3):
                d = 68 + pi*6 + g*2
                A(f'global_load_dwordx2 v[{d}:{d+1}], v3, s[{sp}:{sp+1}] offset:{nc[g]*32}')
        A('s_waitcnt vmcnt(0)')
        A('s_mov_b32 s30, 0x3727c5ac')
        A('s_mov_b32 s31, 0xbfb8aa3b')
        for g in range(3):
            for j in range(4):
                def unp(dst, pi):
                    src = 68 + pi*6 + g*2 + (j >> 1)
                    if j & 1: A(f'v_and_b32 v{dst}, 0xffff0000, v{src}')
                    else: A(f'v_lshlrev_b32 v{dst}, 16, v{src}')
                unp(4, 0); unp(5, 1); unp(6, 2); unp(7, 3)
                sc = V_SC + g*4 + j; sh = V_SH + g*4 + j
                A('v_add_f32 v5, s30, v5')
                A('v_rsq_f32 v5, v5')
                A('s_nop 0')
                A('v_mul_f32 v6, v6, v5')
                A('v_fma_f32 v7, -v4, v6, v7')
                A(f'v_mul_f32 v{sc}, s31, v6')
                A(f'v_mul_f32 v{sh}, s31, v7')
        if o.dbg: A('s_memrealtime s[70:71]')
        A('s_barrier')
        if o.dbg: A('s_memrealtime s[72:73]')
        for r in self.reads(0, hi): A(r)
        A('s_waitcnt lgkmcnt(0)')
        A('s_barrier')
        if o.dbg: A('s_memrealtime s[74:75]')
        ml = self.mfma_list(hi)
        for t in range(NSTEP):
            st = t & 1
            rd = self.reads(t + 1, hi) if t + 1 < NSTEP else []
            seen = set()
            ri = 0
            for mi, (blk, (k, g), s_in) in enumerate(ml):
                a = ACC + 4*blk
                w = SETW[st] + (k*3 + g)*4; x = SETX[st] + 4*s_in
                c = f'v[{a}:{a+3}]'
                if t == 0 and blk not in seen: c = '0'
                seen.add(blk)
                A(f'v_mfma_f32_16x16x32_bf16 v[{a}:{a+3}], v[{w}:{w+3}], v[{x}:{x+3}], {c}')
                due = (mi + 1) * len(rd) // o.rdspan if rd else 0
                while ri < min(due, len(rd)):
                    A(rd[ri]); ri += 1
            assert ri == len(rd)
            if t + 1 < NSTEP:
                A('s_waitcnt lgkmcnt(0)')
                A('s_barrier')
                if o.dbg and t in (3, 9): A(f's_memrealtime s[{76 if t==3 else 78}:{77 if t==3 else 79}]')
        if o.dbg: A('s_memrealtime s[80:81]')
        A(f's_mov_b32 s30, 0xbfb8aa3b')
        A('v_mov_b32 v0, s30'); A('v_mov_b32 v1, s30')
        A('s_nop 7')
        blks = []
        for g in range(3):
            ss = range(8) if g < 2 else (range(4, 8) if hi else range(4))
            for si, s in enumerate(ss):
                blk = (g*8 + s) if g < 2 else 16 + si
                blks.append((blk, g, s))
        tb = 4
        for bi, (blk, g, s) in enumerate(blks):
            a = ACC + 4*blk; T = 4 + (bi % 8)*8
            sc = V_SC + 4*g; sh = V_SH + 4*g
            for p in (0, 2):
                A(f'v_pk_fma_f32 v[{T+p}:{T+p+1}], v[{a+p}:{a+p+1}], v[{sc+p}:{sc+p+1}], v[{sh+p}:{sh+p+1}]')
            for j in range(4): A(f'v_exp_f32 v{T+4+j}, v{T+j}')
            A('s_nop 0')
            for p in (0, 2):
                A(f'v_pk_fma_f32 v[{T+4+p}:{T+5+p}], v[{T+4+p}:{T+5+p}], v[0:1], v[0:1]')
            for j in range(4): A(f'v_rcp_f32 v{T+4+j}, v{T+4+j}')
            A('s_nop 0')
            for p in (0, 2):
                A(f'v_pk_mul_f32 v[{T+p}:{T+p+1}], v[{T+p}:{T+p+1}], v[{T+4+p}:{T+5+p}]')
            A(f'v_cvt_pk_bf16_f32 v{T+4}, v{T}, v{T+1}')
            A(f'v_cvt_pk_bf16_f32 v{T+5}, v{T+2}, v{T+3}')
            A(f'ds_write_b64 v{V_T}, v[{T+4}:{T+5}] offset:{s*32*ORS + nc[g]*32}')
        if o.dbg: A('s_memrealtime s[82:83]')
        if hi: A('s_branch L_store')

    def store(self):
        A = self.A; o = self.opt
        self.lab('L_store')
        A('v_mbcnt_lo_u32_b32 v2, -1, 0'); A('v_mbcnt_hi_u32_b32 v2, -1, v2')
        A('s_mov_b32 s32, s16'); A('s_and_b32 s33, s17, 0xffff'); A(f's_mov_b32 s34, {1024*8*640*2}'); A('s_mov_b32 s35, 0x20000')
        A(f's_mul_i32 s36, s23, {32*ORS}')
        A('s_mul_i32 s37, s23, 1280'); A('s_add_u32 s37, s37, s26'); A('s_add_u32 s37, s37, s27')
        for j in range(5):
            A(f'v_add_u32 v3, {64*j}, v2')
            self.div10(4, 5, 3)
            A(f'v_mul_u32_u24 v6, {ORS}, v4')
            A(f'v_lshl_add_u32 v6, v5, 4, v6')
            A(f'v_add_u32 v{10+j}, s36, v6')
            A(f'v_mul_u32_u24 v6, 10240, v4')
            A(f'v_lshl_add_u32 v{16+j}, v5, 4, v6')
        A('s_waitcnt lgkmcnt(0)')
        A('s_barrier')
        for j in range(5): A(f'ds_read_b128 v[{24+4*j}:{27+4*j}], v{10+j}')
        for j in range(5):
            A(f's_waitcnt lgkmcnt({4-j})')
            A(f'buffer_store_dwordx4 v[{24+4*j}:{27+4*j}], v{16+j}, s[32:35], s37 offen {o.saux}')
        if o.stamp:
            A('s_waitcnt vmcnt(0)'); A('s_barrier')
            A('s_memrealtime s[66:67]'); A('s_memtime s[68:69]'); A('s_waitcnt lgkmcnt(0)'); A('s_sub_u32 s68, s68, s64')
            A('s_cmp_eq_u32 s23, 0'); A('s_cbranch_scc0 L_done')
            A('v_mov_b32 v20, s60'); A('v_mov_b32 v21, s61'); A('v_mov_b32 v22, s66'); A('v_mov_b32 v23, s67')
            A('s_lshl_b32 s44, s2, 4'); A('v_mov_b32 v24, s44')
            A('v_cmp_eq_u32 vcc, 0, v2'); A('s_and_saveexec_b64 s[46:47], vcc'); A('s_cbranch_execz L_done')
            A('global_store_dwordx4 v24, v[20:23], s[62:63]')
            A('v_mov_b32 v25, s68'); A('s_lshl_b32 s44, s2, 2'); A('s_add_u32 s44, s44, 65536'); A('v_mov_b32 v26, s44')
            A('global_store_dword v26, v25, s[62:63]')
        if o.dbg:
            A('s_waitcnt vmcnt(0)'); A('s_barrier')
            A('s_memrealtime s[66:67]'); A('s_memtime s[68:69]'); A('s_waitcnt lgkmcnt(0)'); A('s_sub_u32 s68, s68, s64')
            A('s_cmp_eq_u32 s23, 0'); A('s_cbranch_scc0 L_done')
            A('v_cmp_eq_u32 vcc, 0, v2'); A('s_and_saveexec_b64 s[46:47], vcc'); A('s_cbranch_execz L_done')
            A('v_mov_b32 v24, 0')
            A('s_not_b32 s44, s60'); A('v_mov_b32 v20, s44'); A('global_atomic_umax v24, v20, s[18:19]')
            A('v_mov_b32 v21, s66'); A('global_atomic_umax v24, v21, s[18:19] offset:4')
            A('s_sub_u32 s44, s66, s60'); A('v_mov_b32 v22, s44'); A('global_atomic_umax v24, v22, s[18:19] offset:8')
            A(f's_cmp_eq_u32 s2, {o.dbgwg}'); A('s_cbranch_scc0 L_done')
            A('v_mov_b32 v25, s68'); A('global_store_dword v24, v25, s[18:19] offset:12')
            for i, sr in enumerate([70, 72, 74, 76, 78, 80, 82, 66]):
                A(f's_sub_u32 s44, s{sr}, s60'); A(f'v_mov_b32 v{30+i}, s44'); A(f'global_store_dword v24, v{30+i}, s[18:19] offset:{16+4*i}')
        self.lab('L_done')
        A('s_endpgm')

    def build(self):
        o = self.opt
        R = self.raw
        R(HEADER.rstrip('\n'))
        R(f'; @launch grid=(256,1,1) block=(512,1,1) lds={LDS_BYTES}')
        R('.amdgcn_target "amdgcn-amd-amdhsa--gfx950"'); R('.text'); R(f'.globl {NAME}'); R('.p2align 8'); R(f'.type {NAME},@function')
        self.lab(NAME)
        self.prologue()
        self.A('s_and_b32 s29, s23, 1'); self.A('s_cmp_eq_u32 s29, 1'); self.A('s_cbranch_scc1 L_cons_hi')
        self.consumer(False)
        self.A('s_branch L_store')
        self.consumer(True)
        self.producer()
        self.store()
        R('.section .rodata,"a"'); R('.p2align 6'); R(f'.amdhsa_kernel {NAME}')
        R('  .amdhsa_next_free_vgpr 256'); R('  .amdhsa_next_free_sgpr 96'); R('  .amdhsa_accum_offset 256')
        R('  .amdhsa_group_segment_fixed_size 0'); R('  .amdhsa_kernarg_size 72'); R('  .amdhsa_user_sgpr_count 2')
        R('  .amdhsa_user_sgpr_kernarg_segment_ptr 1'); R('  .amdhsa_system_sgpr_workgroup_id_x 1'); R('.end_amdhsa_kernel')
        return '\n'.join(self.L) + '\n'

def parse(argv):
    p = argparse.ArgumentParser()
    p.add_argument('-o', default='standalone__batchnorm__sampling.s')
    p.add_argument('--stamp', type=int, default=0)
    p.add_argument('--rot', type=int, default=0)
    p.add_argument('--rotm', type=int, default=2)
    p.add_argument('--rotn', type=int, default=1)
    p.add_argument('--rdspan', type=int, default=48)
    p.add_argument('--xaux', default=''); p.add_argument('--waux', default=''); p.add_argument('--saux', default='')
    p.add_argument('--meta', type=int, default=0)
    p.add_argument('--dbg', type=int, default=0)
    p.add_argument('--dbgwg', type=int, default=0)
    return p.parse_args(argv)

META = '''.amdgpu_metadata
---
amdhsa.version: [1, 2]
amdhsa.kernels:
  - .name: {name}
    .symbol: {name}.kd
    .kernarg_segment_size: 72
    .kernarg_segment_align: 8
    .group_segment_fixed_size: 0
    .private_segment_fixed_size: 0
    .wavefront_size: 64
    .sgpr_count: 102
    .vgpr_count: 256
    .max_flat_workgroup_size: 512
    .args:
      - {{.name: kernargs, .size: 72, .offset: 0, .value_kind: by_value}}
...
.end_amdgpu_metadata
'''
if __name__ == '__main__':
    o = parse(sys.argv[1:])
    s = Gen(o).build()
    if o.meta: s += META.format(name=NAME)
    open(o.o, 'w').write(s)
```

```python
import sys, argparse

NAME = 'standalone__batchnorm__sampling_kernel'
HEADER = open('standalone__batchnorm__sampling.s.ref').read().split('; Override launch')[0]

XSLOT = 32768; NXS = 3
WBASE = XSLOT*NXS; WSLOT = 16384; NWS = 4
LDS_BYTES = WBASE + WSLOT*NWS
ORS = 176
NSTEP = 20

SETX = [0, 68]; SETW = [32, 100]
V_SC = 136; V_SH = 148
V_XA = [160, 161]; V_XB = [162, 163]; V_W = 164
V_T = 165
ACC = 176

class Gen:
    def __init__(self, opt):
        self.L = []; self.opt = opt
    def A(self, s): self.L.append('  ' + s)
    def lab(self, s): self.L.append(s + ':')
    def raw(self, s): self.L.append(s)

    def prologue(self):
        A = self.A; o = self.opt
        A('s_cmp_ge_u32 s2, 256'); A('s_cbranch_scc1 L_done')
        if o.stamp or o.dbg or o.spin:
            A('s_memrealtime s[60:61]'); A('s_memtime s[64:65]')
        A('s_load_dwordx16 s[4:19], s[0:1], 0')
        if o.stamp: A('s_load_dwordx2 s[62:63], s[0:1], 64')
        A('v_lshrrev_b32 v1, 6, v0')
        A('v_and_b32 v0, 63, v0')
        A('s_and_b32 s20, s2, 7')
        A('v_readfirstlane_b32 s23, v1')
        A('s_lshr_b32 s21, s2, 3')
        A('s_lshr_b32 s22, s21, 3')
        A('s_and_b32 s21, s21, 7')
        A('s_lshl_b32 s20, s20, 2')
        A('s_add_u32 s20, s20, s22')
        if o.rot:
            A(f's_mul_i32 s24, s22, {o.rotm}')
            A(f's_mul_i32 s25, s21, {o.rotn}')
            A('s_add_u32 s24, s24, s25')
            A('s_mul_i32 s25, s24, 6554'); A('s_lshr_b32 s25, s25, 16'); A('s_mul_i32 s25, s25, 10'); A('s_sub_u32 s24, s24, s25')
        else:
            A('s_mov_b32 s24, 0')
        A('s_mul_i32 s26, s20, 327680')
        A('s_mul_i32 s27, s21, 160')
        A('s_cmp_ge_u32 s23, 4')
        A('s_cbranch_scc1 L_producer')

    def div10(self, vrow, vpiece, vsrc):
        A = self.A
        A(f'v_mul_u32_u24 v{vrow}, 6554, v{vsrc}')
        A(f'v_lshrrev_b32 v{vrow}, 16, v{vrow}')
        A(f'v_mul_u32_u24 v{vpiece}, 10, v{vrow}')
        A(f'v_sub_u32 v{vpiece}, v{vsrc}, v{vpiece}')

    def producer(self):
        A = self.A; o = self.opt
        self.lab('L_producer')
        A('s_sub_u32 s28, s23, 4')
        A('v_lshrrev_b32 v2, 3, v0')
        A('v_lshrrev_b32 v3, 4, v0')
        A('s_and_b32 s29, s28, 1'); A('s_lshl_b32 s29, s29, 2')
        A('v_add_u32 v3, s29, v3')
        A('v_and_b32 v4, 7, v0')
        A('v_xor_b32 v4, v4, v3')
        A('v_mul_u32_u24 v2, 10240, v2')
        A('v_lshl_add_u32 v10, v4, 4, v2')
        for j in range(4):
            A(f's_add_u32 s30, s28, {4*j}')
            A('s_mul_i32 s31, s30, 52'); A('s_lshr_b32 s31, s31, 8')
            A('s_mul_i32 s32, s31, 5'); A('s_sub_u32 s32, s30, s32')
            A('s_lshl_b32 s32, s32, 6')
            A('v_add_u32 v2, s32, v0')
            self.div10(3, 4, 2)
            A('v_bfe_u32 v5, v3, 2, 2'); A('v_lshlrev_b32 v5, 3, v5')
            A('v_lshrrev_b32 v6, 4, v3'); A('v_lshl_add_u32 v5, v6, 2, v5')
            A('v_and_b32 v6, 3, v3'); A('v_add_u32 v5, v5, v6')
            A('v_mul_u32_u24 v5, 1280, v5')
            A('v_lshl_add_u32 v5, v4, 4, v5')
            A('s_mul_i32 s31, s31, 819200')
            if j == 3:
                A('s_cmp_eq_u32 s30, 15'); A('s_cselect_b32 s31, 0x40000000, s31')
            A(f'v_add_u32 v{11+j}, s31, v5')
        A('s_waitcnt lgkmcnt(0)')
        A('s_mov_b32 s32, s4'); A('s_and_b32 s33, s5, 0xffff'); A(f's_mov_b32 s34, {1024*8*640*2}'); A('s_mov_b32 s35, 0x20000')
        A('s_mov_b32 s36, s6'); A('s_and_b32 s37, s7, 0xffff'); A(f's_mov_b32 s38, {3*640*640*2}'); A('s_mov_b32 s39, 0x20000')
        A('s_mul_i32 s40, s28, 81920'); A('s_add_u32 s40, s40, s26')
        A('s_lshl_b32 s41, s28, 10')
        A(f's_add_u32 s42, s41, {WBASE}')
        A('s_mov_b32 s43, s24'); A('s_mov_b32 s44, s24')
        issued = []
        xaux = o.xaux; waux = o.waux
        def adv(reg):
            A(f's_add_u32 s{reg}, s{reg}, 1'); A(f's_cmp_eq_u32 s{reg}, 10'); A(f's_cselect_b32 s{reg}, 0, s{reg}')
        def issue_x(X, svals):
            slot = X % NXS
            if svals[0] == 0:
                A('s_lshl_b32 s45, s43, 7'); A('s_add_u32 s45, s45, s40')
            for s in svals:
                A(f's_add_u32 m0, s41, {slot*XSLOT + s*4096}')
                A(f's_add_u32 s46, s45, {s*1280}')
                if not o.nodma: A(f'buffer_load_dwordx4 v10, s[32:35], s46 offen {xaux} lds')
                issued.append(('x', X))
            if svals[-1] == 7: adv(43)
        def issue_w(t):
            slot = t % NWS
            A('s_mul_i32 s47, s44, 81920'); A('s_add_u32 s47, s47, s27')
            if t & 1: A(f's_add_u32 s47, s47, {32*1280}')
            for j in range(4):
                A(f's_add_u32 m0, s42, {slot*WSLOT + j*4096}')
                A('s_nop 0')
                if not o.nodma: A(f'buffer_load_dwordx4 v{11+j}, s[36:39], s47 offen {waux} lds')
                issued.append(('w', t))
            if t & 1: adv(44)
        def need(step):
            req = [i for i, tg in enumerate(issued) if tg == ('x', step >> 1) or tg == ('w', step)]
            n = len(issued) - 1 - max(req)
            A(f's_waitcnt vmcnt({n})')
        if o.pro == 0:
            issue_x(0, list(range(8))); issue_w(0); issue_w(1); issue_x(1, list(range(8))); issue_w(2); issue_w(3); issue_x(2, list(range(8)))
            need(0); A('s_barrier')
            need(1); A('s_barrier')
        else:
            issue_w(0); issue_x(0, list(range(8))); issue_w(1)
            need(0); A('s_barrier')
            issue_x(1, list(range(8))); issue_w(2)
            need(1); A('s_barrier')
            issue_w(3); issue_x(2, list(range(8)))
        for t in range(NSTEP):
            if t + 4 < NSTEP: issue_w(t + 4)
            if t >= 1:
                X = (t - 1) >> 1
                if X + 3 < 10:
                    issue_x(X + 3, [0, 1, 2, 3] if (t & 1) else [4, 5, 6, 7])
            if t + 1 < NSTEP:
                if t + 2 < NSTEP: need(t + 2)
                if not o.nobar: A('s_barrier')
        A('s_branch L_store')

    def mfma_list(self, hi):
        out = []
        for s_in in range(8):
            for k in range(3):
                s_out = s_in + 1 - k
                if not 0 <= s_out < 8: continue
                out.append((s_out, (k, 0), s_in))
                out.append((8 + s_out, (k, 1), s_in))
                if (not hi and s_out < 4): out.append((16 + s_out, (k, 2), s_in))
                if (hi and s_out >= 4): out.append((16 + s_out - 4, (k, 2), s_in))
        assert len(out) == 55
        return out
    def ncols(self, hi):
        return [3, 4, 2] if hi else [0, 1, 2]
    def reads(self, step, hi):
        st = step & 1
        xs = (step >> 1) % NXS; kk = step & 1; ws = step % NWS
        nc = self.ncols(hi)
        r = []
        xr = []
        for s in range(8):
            va = (V_XA if xs < 2 else V_XB)[kk]
            off = (xs % 2) * XSLOT * (1 if xs < 2 else 0) + s*4096
            d = SETX[st] + 4*s
            xr.append(f'ds_read_b128 v[{d}:{d+3}], v{va} offset:{off}')
        wr = []
        for k in range(3):
            for g in range(3):
                for u in range(2):
                    d = SETW[st] + (k*3 + g)*4 + 2*u
                    off = ws*WSLOT + k*5120 + u*2560 + nc[g]*32
                    wr.append(f'ds_read_b64_tr_b16 v[{d}:{d+1}], v{V_W} offset:{off}')
        while xr or wr:
            if wr: r.append(wr.pop(0))
            if wr: r.append(wr.pop(0))
            if xr: r.append(xr.pop(0))
        return r
    def consumer(self, hi):
        A = self.A; o = self.opt
        tag = 'hi' if hi else 'lo'
        self.lab(f'L_cons_{tag}')
        nc = self.ncols(hi)
        A('s_lshr_b32 s28, s23, 1')
        A('v_and_b32 v1, 15, v0')
        A('v_lshrrev_b32 v2, 4, v0')
        A('v_lshrrev_b32 v3, 1, v1')
        A('v_xor_b32 v3, v3, v2')
        A('v_lshlrev_b32 v3, 4, v3')
        A('v_lshl_add_u32 v3, v1, 7, v3')
        A('s_lshl_b32 s29, s28, 11')
        A(f'v_add_u32 v{V_XA[0]}, s29, v3')
        A(f'v_xor_b32 v{V_XA[1]}, 64, v{V_XA[0]}')
        A(f'v_add_u32 v{V_XB[0]}, 0x10000, v{V_XA[0]}')
        A(f'v_add_u32 v{V_XB[1]}, 0x10000, v{V_XA[1]}')
        A('v_lshrrev_b32 v3, 2, v1')
        A('v_lshl_add_u32 v3, v2, 2, v3')
        A('v_mul_u32_u24 v3, 160, v3')
        A('v_and_b32 v4, 3, v1')
        A('v_lshl_add_u32 v3, v4, 3, v3')
        A(f'v_add_u32 v{V_W}, {WBASE}, v3')
        A('s_lshl_b32 s29, s28, 4')
        A('v_add_u32 v3, s29, v1')
        A(f'v_mul_u32_u24 v3, {ORS}, v3')
        A(f'v_lshl_add_u32 v{V_T}, v2, 3, v3')
        A(f'v_lshlrev_b32 v3, 3, v2')
        A('v_add_u32 v3, s27, v3')
        A('s_waitcnt lgkmcnt(0)')
        for pi, sp in enumerate([8, 10, 12, 14]):
            for g in range(3):
                d = 68 + pi*6 + g*2
                A(f'global_load_dwordx2 v[{d}:{d+1}], v3, s[{sp}:{sp+1}] offset:{nc[g]*32}')
        A('s_waitcnt vmcnt(0)')
        A('s_mov_b32 s30, 0x3727c5ac')
        A('s_mov_b32 s31, 0xbfb8aa3b')
        for g in range(3):
            for j in range(4):
                def unp(dst, pi):
                    src = 68 + pi*6 + g*2 + (j >> 1)
                    if j & 1: A(f'v_and_b32 v{dst}, 0xffff0000, v{src}')
                    else: A(f'v_lshlrev_b32 v{dst}, 16, v{src}')
                unp(4, 0); unp(5, 1); unp(6, 2); unp(7, 3)
                sc = V_SC + g*4 + j; sh = V_SH + g*4 + j
                A('v_add_f32 v5, s30, v5')
                A('v_rsq_f32 v5, v5')
                A('s_nop 0')
                A('v_mul_f32 v6, v6, v5')
                A('v_fma_f32 v7, -v4, v6, v7')
                A(f'v_mul_f32 v{sc}, s31, v6')
                A(f'v_mul_f32 v{sh}, s31, v7')
        if o.dbg: A('s_memrealtime s[70:71]')
        A('s_barrier')
        if o.dbg: A('s_memrealtime s[72:73]')
        for r in self.reads(0, hi): A(r)
        A('s_waitcnt lgkmcnt(0)')
        A('s_barrier')
        if o.dbg: A('s_memrealtime s[74:75]')
        ml = self.mfma_list(hi)
        for t in range(NSTEP):
            st = t & 1
            rd = self.reads(t + 1, hi) if (t + 1 < NSTEP and not o.nords) else []
            seen = set()
            ri = 0
            for mi, (blk, (k, g), s_in) in enumerate(ml):
                a = ACC + 4*blk
                w = SETW[st] + (k*3 + g)*4; x = SETX[st] + 4*s_in
                c = f'v[{a}:{a+3}]'
                if t == 0 and blk not in seen: c = '0'
                seen.add(blk)
                A(f'v_mfma_f32_16x16x32_bf16 v[{a}:{a+3}], v[{w}:{w+3}], v[{x}:{x+3}], {c}')
                due = (mi + 1) * len(rd) // o.rdspan if rd else 0
                while ri < min(due, len(rd)):
                    A(rd[ri]); ri += 1
            assert ri == len(rd)
            if t + 1 < NSTEP:
                A('s_waitcnt lgkmcnt(0)')
                if not o.nobar: A('s_barrier')
                if o.dbg and t in (3, 9): A(f's_memrealtime s[{76 if t==3 else 78}:{77 if t==3 else 79}]')
        if o.dbg: A('s_memrealtime s[80:81]')
        A(f's_mov_b32 s30, 0xbfb8aa3b')
        A('v_mov_b32 v0, s30'); A('v_mov_b32 v1, s30')
        A('s_nop 7')
        blks = []
        for g in range(3):
            ss = range(8) if g < 2 else (range(4, 8) if hi else range(4))
            for si, s in enumerate(ss):
                blk = (g*8 + s) if g < 2 else 16 + si
                blks.append((blk, g, s))
        tb = 4
        for bi, (blk, g, s) in enumerate(blks):
            a = ACC + 4*blk; T = 4 + (bi % 8)*8
            sc = V_SC + 4*g; sh = V_SH + 4*g
            for p in (0, 2):
                A(f'v_pk_fma_f32 v[{T+p}:{T+p+1}], v[{a+p}:{a+p+1}], v[{sc+p}:{sc+p+1}], v[{sh+p}:{sh+p+1}]')
            for j in range(4): A(f'v_exp_f32 v{T+4+j}, v{T+j}')
            A('s_nop 0')
            for p in (0, 2):
                A(f'v_pk_fma_f32 v[{T+4+p}:{T+5+p}], v[{T+4+p}:{T+5+p}], v[0:1], v[0:1]')
            for j in range(4): A(f'v_rcp_f32 v{T+4+j}, v{T+4+j}')
            A('s_nop 0')
            for p in (0, 2):
                A(f'v_pk_mul_f32 v[{T+p}:{T+p+1}], v[{T+p}:{T+p+1}], v[{T+4+p}:{T+5+p}]')
            A(f'v_cvt_pk_bf16_f32 v{T+4}, v{T}, v{T+1}')
            A(f'v_cvt_pk_bf16_f32 v{T+5}, v{T+2}, v{T+3}')
            A(f'ds_write_b64 v{V_T}, v[{T+4}:{T+5}] offset:{s*32*ORS + nc[g]*32}')
        if o.dbg: A('s_memrealtime s[82:83]')
        if hi: A('s_branch L_store')

    def store(self):
        A = self.A; o = self.opt
        self.lab('L_store')
        A('v_mbcnt_lo_u32_b32 v2, -1, 0'); A('v_mbcnt_hi_u32_b32 v2, -1, v2')
        A('s_mov_b32 s32, s16'); A('s_and_b32 s33, s17, 0xffff'); A(f's_mov_b32 s34, {1024*8*640*2}'); A('s_mov_b32 s35, 0x20000')
        A(f's_mul_i32 s36, s23, {32*ORS}')
        A('s_mul_i32 s37, s23, 1280'); A('s_add_u32 s37, s37, s26'); A('s_add_u32 s37, s37, s27')
        for j in range(5):
            A(f'v_add_u32 v3, {64*j}, v2')
            self.div10(4, 5, 3)
            A(f'v_mul_u32_u24 v6, {ORS}, v4')
            A(f'v_lshl_add_u32 v6, v5, 4, v6')
            A(f'v_add_u32 v{10+j}, s36, v6')
            A(f'v_mul_u32_u24 v6, 10240, v4')
            A(f'v_lshl_add_u32 v{16+j}, v5, 4, v6')
        A('s_waitcnt lgkmcnt(0)')
        A('s_barrier')
        for j in range(5): A(f'ds_read_b128 v[{24+4*j}:{27+4*j}], v{10+j}')
        for j in range(5):
            A(f's_waitcnt lgkmcnt({4-j})')
            A(f'buffer_store_dwordx4 v[{24+4*j}:{27+4*j}], v{16+j}, s[32:35], s37 offen {o.saux}')
        if o.stamp:
            A('s_waitcnt vmcnt(0)'); A('s_barrier')
            A('s_memrealtime s[66:67]'); A('s_memtime s[68:69]'); A('s_waitcnt lgkmcnt(0)'); A('s_sub_u32 s68, s68, s64')
            A('s_cmp_eq_u32 s23, 0'); A('s_cbranch_scc0 L_done')
            A('v_mov_b32 v20, s60'); A('v_mov_b32 v21, s61'); A('v_mov_b32 v22, s66'); A('v_mov_b32 v23, s67')
            A('s_lshl_b32 s44, s2, 4'); A('v_mov_b32 v24, s44')
            A('v_cmp_eq_u32 vcc, 0, v2'); A('s_and_saveexec_b64 s[46:47], vcc'); A('s_cbranch_execz L_done')
            A('global_store_dwordx4 v24, v[20:23], s[62:63]')
            A('v_mov_b32 v25, s68'); A('s_lshl_b32 s44, s2, 2'); A('s_add_u32 s44, s44, 65536'); A('v_mov_b32 v26, s44')
            A('global_store_dword v26, v25, s[62:63]')
        if o.spin:
            A('s_waitcnt vmcnt(0)')
            A('s_cmp_eq_u32 s2, 0'); A('s_cbranch_scc0 L_done')
            A('s_cmp_eq_u32 s23, 0'); A('s_cbranch_scc0 L_done')
            A('s_memrealtime s[66:67]'); A('s_waitcnt lgkmcnt(0)')
            A('s_sub_u32 s44, s66, s60'); A(f's_mul_i32 s44, s44, {o.spin}')
            self.lab('L_spin')
            A('s_memrealtime s[66:67]'); A('s_waitcnt lgkmcnt(0)')
            A('s_sub_u32 s45, s66, s60'); A('s_cmp_lt_u32 s45, s44'); A('s_cbranch_scc1 L_spin')
        if o.dbg:
            A('s_waitcnt vmcnt(0)'); A('s_barrier')
            A('s_memrealtime s[66:67]'); A('s_memtime s[68:69]'); A('s_waitcnt lgkmcnt(0)'); A('s_sub_u32 s68, s68, s64')
            A('s_cmp_eq_u32 s23, 0'); A('s_cbranch_scc0 L_done')
            A('v_cmp_eq_u32 vcc, 0, v2'); A('s_and_saveexec_b64 s[46:47], vcc'); A('s_cbranch_execz L_done')
            A('v_mov_b32 v24, 0')
            if o.dbg == 2:
                A('s_not_b32 s44, s60'); A('v_mov_b32 v20, s44'); A('global_atomic_umax v24, v20, s[18:19]')
                A('v_mov_b32 v21, s66'); A('global_atomic_umax v24, v21, s[18:19] offset:4')
                A('s_sub_u32 s44, s66, s60'); A('v_mov_b32 v22, s44'); A('global_atomic_umax v24, v22, s[18:19] offset:8')
            A(f's_cmp_eq_u32 s2, {o.dbgwg}'); A('s_cbranch_scc0 L_done')
            A('v_mov_b32 v25, s68'); A('global_store_dword v24, v25, s[18:19] offset:12')
            for i, sr in enumerate([70, 72, 74, 76, 78, 80, 82, 66]):
                A(f's_sub_u32 s44, s{sr}, s60'); A(f'v_mov_b32 v{30+i}, s44'); A(f'global_store_dword v24, v{30+i}, s[18:19] offset:{16+4*i}')
        self.lab('L_done')
        A('s_endpgm')

    def post(self):
        if self.opt.cyc:
            self.L = [l.replace('s_memrealtime s[7', 's_memtime s[7').replace('s_memrealtime s[8', 's_memtime s[8') for l in self.L]
            self.L = [l.replace('s_sub_u32 s44, s70, s60','s_sub_u32 s44, s70, s64').replace('s_sub_u32 s44, s72, s60','s_sub_u32 s44, s72, s64').replace('s_sub_u32 s44, s74, s60','s_sub_u32 s44, s74, s64').replace('s_sub_u32 s44, s76, s60','s_sub_u32 s44, s76, s64').replace('s_sub_u32 s44, s78, s60','s_sub_u32 s44, s78, s64').replace('s_sub_u32 s44, s80, s60','s_sub_u32 s44, s80, s64').replace('s_sub_u32 s44, s82, s60','s_sub_u32 s44, s82, s64') for l in self.L]
    def build(self):
        o = self.opt
        R = self.raw
        R(HEADER.rstrip('\n'))
        R(f'; @launch grid=(256,1,1) block=(512,1,1) lds={LDS_BYTES}')
        R('.amdgcn_target "amdgcn-amd-amdhsa--gfx950"'); R('.text'); R(f'.globl {NAME}'); R('.p2align 8'); R(f'.type {NAME},@function')
        self.lab(NAME)
        self.prologue()
        self.A('s_and_b32 s29, s23, 1'); self.A('s_cmp_eq_u32 s29, 1'); self.A('s_cbranch_scc1 L_cons_hi')
        self.consumer(False)
        self.A('s_branch L_store')
        self.consumer(True)
        self.producer()
        self.store()
        R('.section .rodata,"a"'); R('.p2align 6'); R(f'.amdhsa_kernel {NAME}')
        R('  .amdhsa_next_free_vgpr 256'); R('  .amdhsa_next_free_sgpr 96'); R('  .amdhsa_accum_offset 256')
        R('  .amdhsa_group_segment_fixed_size 0'); R('  .amdhsa_kernarg_size 72'); R('  .amdhsa_user_sgpr_count 2')
        R('  .amdhsa_user_sgpr_kernarg_segment_ptr 1'); R('  .amdhsa_system_sgpr_workgroup_id_x 1'); R('.end_amdhsa_kernel')
        self.post()
        return '\n'.join(self.L) + '\n'

def parse(argv):
    p = argparse.ArgumentParser()
    p.add_argument('-o', default='standalone__batchnorm__sampling.s')
    p.add_argument('--stamp', type=int, default=0)
    p.add_argument('--rot', type=int, default=0)
    p.add_argument('--rotm', type=int, default=2)
    p.add_argument('--rotn', type=int, default=1)
    p.add_argument('--rdspan', type=int, default=48)
    p.add_argument('--xaux', default=''); p.add_argument('--waux', default=''); p.add_argument('--saux', default='')
    p.add_argument('--meta', type=int, default=0)
    p.add_argument('--dbg', type=int, default=0)
    p.add_argument('--pro', type=int, default=1)
    p.add_argument('--spin', type=int, default=0)
    p.add_argument('--nobar', type=int, default=0)
    p.add_argument('--nords', type=int, default=0)
    p.add_argument('--nodma', type=int, default=0)
    p.add_argument('--cyc', type=int, default=0)
    p.add_argument('--dbgwg', type=int, default=0)
    return p.parse_args(argv)

META = '''.amdgpu_metadata
---
amdhsa.version: [1, 2]
amdhsa.kernels:
  - .name: {name}
    .symbol: {name}.kd
    .kernarg_segment_size: 72
    .kernarg_segment_align: 8
    .group_segment_fixed_size: 0
    .private_segment_fixed_size: 0
    .wavefront_size: 64
    .sgpr_count: 102
    .vgpr_count: 256
    .max_flat_workgroup_size: 512
    .args:
      - {{.name: kernargs, .size: 72, .offset: 0, .value_kind: by_value}}
...
.end_amdgpu_metadata
'''
if __name__ == '__main__':
    o = parse(sys.argv[1:])
    s = Gen(o).build()
    if o.meta: s += META.format(name=NAME)
    open(o.o, 'w').write(s)
```

```python
import sys, argparse

NAME = 'standalone__batchnorm__sampling_kernel'
HEADER = open('standalone__batchnorm__sampling.s.ref').read().split('; Override launch')[0]

XSLOT = 32768; NXS = 3
WBASE = XSLOT*NXS; WSLOT = 16384; NWS = 4
LDS_BYTES = WBASE + WSLOT*NWS
ORS = 176
NSTEP = 20

SETX = [0, 68]; SETW = [32, 100]
V_SC = 136; V_SH = 148
V_XA = [160, 161]; V_XB = [162, 163]; V_W = 164
V_T = 165
ACC = 176

class Gen:
    def __init__(self, opt):
        self.L = []; self.opt = opt
    def A(self, s): self.L.append('  ' + s)
    def lab(self, s): self.L.append(s + ':')
    def raw(self, s): self.L.append(s)

    def prologue(self):
        A = self.A; o = self.opt
        A('s_cmp_ge_u32 s2, 256'); A('s_cbranch_scc1 L_done')
        if o.stamp or o.dbg or o.spin:
            A('s_memrealtime s[60:61]'); A('s_memtime s[64:65]')
        A('s_load_dwordx16 s[4:19], s[0:1], 0')
        if o.jumps:
            for j in range(o.jumps):
                A(f's_branch L_jj{j}')
                self.raw('  .fill 256, 4, 0xbf800000')
                self.lab(f'L_jj{j}')
        if o.stamp or o.dbg == 3: A('s_load_dwordx2 s[62:63], s[0:1], 64')
        A('v_lshrrev_b32 v1, 6, v0')
        A('v_and_b32 v0, 63, v0')
        A('s_and_b32 s20, s2, 7')
        A('v_readfirstlane_b32 s23, v1')
        A('s_lshr_b32 s21, s2, 3')
        A('s_lshr_b32 s22, s21, 3')
        A('s_and_b32 s21, s21, 7')
        A('s_lshl_b32 s20, s20, 2')
        A('s_add_u32 s20, s20, s22')
        if o.rot:
            A(f's_mul_i32 s24, s22, {o.rotm}')
            A(f's_mul_i32 s25, s21, {o.rotn}')
            A('s_add_u32 s24, s24, s25')
            A('s_mul_i32 s25, s24, 6554'); A('s_lshr_b32 s25, s25, 16'); A('s_mul_i32 s25, s25, 10'); A('s_sub_u32 s24, s24, s25')
        else:
            A('s_mov_b32 s24, 0')
        A('s_mul_i32 s26, s20, 327680')
        A('s_mul_i32 s27, s21, 160')
        A('s_cmp_ge_u32 s23, 4')
        A('s_cbranch_scc1 L_producer')

    def div10(self, vrow, vpiece, vsrc):
        A = self.A
        A(f'v_mul_u32_u24 v{vrow}, 6554, v{vsrc}')
        A(f'v_lshrrev_b32 v{vrow}, 16, v{vrow}')
        A(f'v_mul_u32_u24 v{vpiece}, 10, v{vrow}')
        A(f'v_sub_u32 v{vpiece}, v{vsrc}, v{vpiece}')

    def producer(self):
        A = self.A; o = self.opt
        self.lab('L_producer')
        A('s_sub_u32 s28, s23, 4')
        A('v_lshrrev_b32 v2, 3, v0')
        A('v_lshrrev_b32 v3, 4, v0')
        A('s_and_b32 s29, s28, 1'); A('s_lshl_b32 s29, s29, 2')
        A('v_add_u32 v3, s29, v3')
        A('v_and_b32 v4, 7, v0')
        A('v_xor_b32 v4, v4, v3')
        A('v_mul_u32_u24 v2, 10240, v2')
        A('v_lshl_add_u32 v10, v4, 4, v2')
        for j in range(4):
            A(f's_add_u32 s30, s28, {4*j}')
            A('s_mul_i32 s31, s30, 52'); A('s_lshr_b32 s31, s31, 8')
            A('s_mul_i32 s32, s31, 5'); A('s_sub_u32 s32, s30, s32')
            A('s_lshl_b32 s32, s32, 6')
            A('v_add_u32 v2, s32, v0')
            self.div10(3, 4, 2)
            A('v_bfe_u32 v5, v3, 2, 2'); A('v_lshlrev_b32 v5, 3, v5')
            A('v_lshrrev_b32 v6, 4, v3'); A('v_lshl_add_u32 v5, v6, 2, v5')
            A('v_and_b32 v6, 3, v3'); A('v_add_u32 v5, v5, v6')
            A('v_mul_u32_u24 v5, 1280, v5')
            A('v_lshl_add_u32 v5, v4, 4, v5')
            A('s_mul_i32 s31, s31, 819200')
            if j == 3:
                A('s_cmp_eq_u32 s30, 15'); A('s_cselect_b32 s31, 0x40000000, s31')
            A(f'v_add_u32 v{11+j}, s31, v5')
        A('s_waitcnt lgkmcnt(0)')
        A('s_mov_b32 s32, s4'); A('s_and_b32 s33, s5, 0xffff'); A(f's_mov_b32 s34, {1024*8*640*2}'); A('s_mov_b32 s35, 0x20000')
        A('s_mov_b32 s36, s6'); A('s_and_b32 s37, s7, 0xffff'); A(f's_mov_b32 s38, {3*640*640*2}'); A('s_mov_b32 s39, 0x20000')
        A('s_mul_i32 s40, s28, 81920'); A('s_add_u32 s40, s40, s26')
        A('s_lshl_b32 s41, s28, 10')
        A(f's_add_u32 s42, s41, {WBASE}')
        A('s_mov_b32 s43, s24'); A('s_mov_b32 s44, s24')
        issued = []
        xaux = o.xaux; waux = o.waux
        def adv(reg):
            A(f's_add_u32 s{reg}, s{reg}, 1'); A(f's_cmp_eq_u32 s{reg}, 10'); A(f's_cselect_b32 s{reg}, 0, s{reg}')
        def issue_x(X, svals):
            slot = X % NXS
            if svals[0] == 0:
                A('s_lshl_b32 s45, s43, 7'); A('s_add_u32 s45, s45, s40')
            for s in svals:
                A(f's_add_u32 m0, s41, {slot*XSLOT + s*4096}')
                A(f's_add_u32 s46, s45, {s*1280}')
                if not o.nodma: A(f'buffer_load_dwordx4 v10, s[32:35], s46 offen {xaux} lds')
                issued.append(('x', X))
            if svals[-1] == 7: adv(43)
        def issue_w(t):
            slot = t % NWS
            A('s_mul_i32 s47, s44, 81920'); A('s_add_u32 s47, s47, s27')
            if t & 1: A(f's_add_u32 s47, s47, {32*1280}')
            for j in range(4):
                A(f's_add_u32 m0, s42, {slot*WSLOT + j*4096}')
                A('s_nop 0')
                if not o.nodma: A(f'buffer_load_dwordx4 v{11+j}, s[36:39], s47 offen {waux} lds')
                issued.append(('w', t))
            if t & 1: adv(44)
        def need(step):
            req = [i for i, tg in enumerate(issued) if tg == ('x', step >> 1) or tg == ('w', step)]
            n = len(issued) - 1 - max(req)
            A(f's_waitcnt vmcnt({n})')
        if o.pro == 0:
            issue_x(0, list(range(8))); issue_w(0); issue_w(1); issue_x(1, list(range(8))); issue_w(2); issue_w(3); issue_x(2, list(range(8)))
            need(0); A('s_barrier')
            need(1); A('s_barrier')
        else:
            issue_w(0); issue_x(0, list(range(8))); issue_w(1)
            need(0); A('s_barrier')
            issue_x(1, list(range(8))); issue_w(2)
            need(1); A('s_barrier')
            issue_w(3); issue_x(2, list(range(8)))
        for t in range(NSTEP):
            if t + 4 < NSTEP: issue_w(t + 4)
            if t >= 1:
                X = (t - 1) >> 1
                if X + 3 < 10:
                    issue_x(X + 3, [0, 1, 2, 3] if (t & 1) else [4, 5, 6, 7])
            if t + 1 < NSTEP:
                if t + 2 < NSTEP: need(t + 2)
                if not o.nobar: A('s_barrier')
        A('s_branch L_store')

    def mfma_list(self, hi):
        out = []
        for s_in in range(8):
            for k in range(3):
                s_out = s_in + 1 - k
                if not 0 <= s_out < 8: continue
                out.append((s_out, (k, 0), s_in))
                out.append((8 + s_out, (k, 1), s_in))
                if (not hi and s_out < 4): out.append((16 + s_out, (k, 2), s_in))
                if (hi and s_out >= 4): out.append((16 + s_out - 4, (k, 2), s_in))
        assert len(out) == 55
        od = self.opt.order
        if od == 1:
            out.sort(key=lambda e: (e[1][0], e[1][1], e[2]))
        elif od == 2:
            out.sort(key=lambda e: (e[0], e[1][0]))
        elif od == 3:
            out.sort(key=lambda e: ((e[0] % 8) if e[0] < 16 else (e[0]-16 + (4 if hi else 0)), e[1][1], e[1][0]))
        elif od == 4:
            out.sort(key=lambda e: (e[1][1], e[1][0], e[2]))
        return out
    def ncols(self, hi):
        return [3, 4, 2] if hi else [0, 1, 2]
    def reads(self, step, hi):
        st = step & 1
        xs = (step >> 1) % NXS; kk = step & 1; ws = step % NWS
        nc = self.ncols(hi)
        r = []
        xr = []
        for s in range(8):
            va = (V_XA if xs < 2 else V_XB)[kk]
            off = (xs % 2) * XSLOT * (1 if xs < 2 else 0) + s*4096
            d = SETX[st] + 4*s
            xr.append(f'ds_read_b128 v[{d}:{d+3}], v{va} offset:{off}')
        wr = []
        for k in range(3):
            for g in range(3):
                for u in range(2):
                    d = SETW[st] + (k*3 + g)*4 + 2*u
                    off = ws*WSLOT + k*5120 + u*2560 + nc[g]*32
                    wr.append(f'ds_read_b64_tr_b16 v[{d}:{d+1}], v{V_W} offset:{off}')
        while xr or wr:
            if wr: r.append(wr.pop(0))
            if wr: r.append(wr.pop(0))
            if xr: r.append(xr.pop(0))
        return r
    def consumer(self, hi):
        A = self.A; o = self.opt
        tag = 'hi' if hi else 'lo'
        self.lab(f'L_cons_{tag}')
        nc = self.ncols(hi)
        A('s_lshr_b32 s28, s23, 1')
        A('v_and_b32 v1, 15, v0')
        A('v_lshrrev_b32 v2, 4, v0')
        A('v_lshrrev_b32 v3, 1, v1')
        A('v_xor_b32 v3, v3, v2')
        A('v_lshlrev_b32 v3, 4, v3')
        A('v_lshl_add_u32 v3, v1, 7, v3')
        A('s_lshl_b32 s29, s28, 11')
        A(f'v_add_u32 v{V_XA[0]}, s29, v3')
        A(f'v_xor_b32 v{V_XA[1]}, 64, v{V_XA[0]}')
        A(f'v_add_u32 v{V_XB[0]}, 0x10000, v{V_XA[0]}')
        A(f'v_add_u32 v{V_XB[1]}, 0x10000, v{V_XA[1]}')
        A('v_lshrrev_b32 v3, 2, v1')
        A('v_lshl_add_u32 v3, v2, 2, v3')
        A('v_mul_u32_u24 v3, 160, v3')
        A('v_and_b32 v4, 3, v1')
        A('v_lshl_add_u32 v3, v4, 3, v3')
        A(f'v_add_u32 v{V_W}, {WBASE}, v3')
        A('s_lshl_b32 s29, s28, 4')
        A('v_add_u32 v3, s29, v1')
        A(f'v_mul_u32_u24 v3, {ORS}, v3')
        A(f'v_lshl_add_u32 v{V_T}, v2, 3, v3')
        A(f'v_lshlrev_b32 v3, 3, v2')
        A('v_add_u32 v3, s27, v3')
        A('s_waitcnt lgkmcnt(0)')
        for pi, sp in enumerate([8, 10, 12, 14]):
            for g in range(3):
                d = 68 + pi*6 + g*2
                A(f'global_load_dwordx2 v[{d}:{d+1}], v3, s[{sp}:{sp+1}] offset:{nc[g]*32}')
        A('s_waitcnt vmcnt(0)')
        A('s_mov_b32 s30, 0x3727c5ac')
        A('s_mov_b32 s31, 0xbfb8aa3b')
        for g in range(3):
            for j in range(4):
                def unp(dst, pi):
                    src = 68 + pi*6 + g*2 + (j >> 1)
                    if j & 1: A(f'v_and_b32 v{dst}, 0xffff0000, v{src}')
                    else: A(f'v_lshlrev_b32 v{dst}, 16, v{src}')
                unp(4, 0); unp(5, 1); unp(6, 2); unp(7, 3)
                sc = V_SC + g*4 + j; sh = V_SH + g*4 + j
                A('v_add_f32 v5, s30, v5')
                A('v_rsq_f32 v5, v5')
                A('s_nop 0')
                A('v_mul_f32 v6, v6, v5')
                A('v_fma_f32 v7, -v4, v6, v7')
                A(f'v_mul_f32 v{sc}, s31, v6')
                A(f'v_mul_f32 v{sh}, s31, v7')
        if o.dbg: A('s_memrealtime s[70:71]')
        A('s_barrier')
        if o.dbg: A('s_memrealtime s[72:73]')
        for r in self.reads(0, hi): A(r)
        A('s_waitcnt lgkmcnt(0)')
        A('s_barrier')
        if o.dbg: A('s_memrealtime s[74:75]')
        ml = self.mfma_list(hi)
        for t in range(NSTEP):
            st = t & 1
            rd = self.reads(t + 1, hi) if (t + 1 < NSTEP and not o.nords) else []
            seen = set()
            ri = 0
            for mi, (blk, (k, g), s_in) in enumerate(ml):
                a = ACC + 4*blk
                w = SETW[st] + (k*3 + g)*4; x = SETX[st] + 4*s_in
                c = f'v[{a}:{a+3}]'
                if t == 0 and blk not in seen: c = '0'
                seen.add(blk)
                A(f'v_mfma_f32_16x16x32_bf16 v[{a}:{a+3}], v[{w}:{w+3}], v[{x}:{x+3}], {c}')
                due = (mi + 1) * len(rd) // o.rdspan if rd else 0
                while ri < min(due, len(rd)):
                    A(rd[ri]); ri += 1
            assert ri == len(rd)
            if t + 1 < NSTEP:
                A('s_waitcnt lgkmcnt(0)')
                if not o.nobar: A('s_barrier')
                for _ in range(o.pad): A('s_nop 7')
                if o.dbg and t in (3, 9): A(f's_memrealtime s[{76 if t==3 else 78}:{77 if t==3 else 79}]')
                if o.dbg == 3 and t == 9: A('s_memtime s[84:85]')
        if o.dbg: A('s_memrealtime s[80:81]')
        if o.dbg == 3: A('s_memtime s[86:87]')
        A(f's_mov_b32 s30, 0xbfb8aa3b')
        A('v_mov_b32 v0, s30'); A('v_mov_b32 v1, s30')
        A('s_nop 7')
        blks = []
        for g in range(3):
            ss = range(8) if g < 2 else (range(4, 8) if hi else range(4))
            for si, s in enumerate(ss):
                blk = (g*8 + s) if g < 2 else 16 + si
                blks.append((blk, g, s))
        tb = 4
        for bi, (blk, g, s) in enumerate(blks):
            a = ACC + 4*blk; T = 4 + (bi % 8)*8
            sc = V_SC + 4*g; sh = V_SH + 4*g
            for p in (0, 2):
                A(f'v_pk_fma_f32 v[{T+p}:{T+p+1}], v[{a+p}:{a+p+1}], v[{sc+p}:{sc+p+1}], v[{sh+p}:{sh+p+1}]')
            for j in range(4): A(f'v_exp_f32 v{T+4+j}, v{T+j}')
            A('s_nop 0')
            for p in (0, 2):
                A(f'v_pk_fma_f32 v[{T+4+p}:{T+5+p}], v[{T+4+p}:{T+5+p}], v[0:1], v[0:1]')
            for j in range(4): A(f'v_rcp_f32 v{T+4+j}, v{T+4+j}')
            A('s_nop 0')
            for p in (0, 2):
                A(f'v_pk_mul_f32 v[{T+p}:{T+p+1}], v[{T+p}:{T+p+1}], v[{T+4+p}:{T+5+p}]')
            A(f'v_cvt_pk_bf16_f32 v{T+4}, v{T}, v{T+1}')
            A(f'v_cvt_pk_bf16_f32 v{T+5}, v{T+2}, v{T+3}')
            A(f'ds_write_b64 v{V_T}, v[{T+4}:{T+5}] offset:{s*32*ORS + nc[g]*32}')
        if o.dbg: A('s_memrealtime s[82:83]')
        if hi: A('s_branch L_store')

    def store(self):
        A = self.A; o = self.opt
        self.lab('L_store')
        A('v_mbcnt_lo_u32_b32 v2, -1, 0'); A('v_mbcnt_hi_u32_b32 v2, -1, v2')
        A('s_mov_b32 s32, s16'); A('s_and_b32 s33, s17, 0xffff'); A(f's_mov_b32 s34, {1024*8*640*2}'); A('s_mov_b32 s35, 0x20000')
        A(f's_mul_i32 s36, s23, {32*ORS}')
        A('s_mul_i32 s37, s23, 1280'); A('s_add_u32 s37, s37, s26'); A('s_add_u32 s37, s37, s27')
        for j in range(5):
            A(f'v_add_u32 v3, {64*j}, v2')
            self.div10(4, 5, 3)
            A(f'v_mul_u32_u24 v6, {ORS}, v4')
            A(f'v_lshl_add_u32 v6, v5, 4, v6')
            A(f'v_add_u32 v{10+j}, s36, v6')
            A(f'v_mul_u32_u24 v6, 10240, v4')
            A(f'v_lshl_add_u32 v{16+j}, v5, 4, v6')
        A('s_waitcnt lgkmcnt(0)')
        A('s_barrier')
        for j in range(5): A(f'ds_read_b128 v[{24+4*j}:{27+4*j}], v{10+j}')
        for j in range(5):
            A(f's_waitcnt lgkmcnt({4-j})')
            A(f'buffer_store_dwordx4 v[{24+4*j}:{27+4*j}], v{16+j}, s[32:35], s37 offen {o.saux}')
        if o.stamp:
            A('s_waitcnt vmcnt(0)'); A('s_barrier')
            A('s_memrealtime s[66:67]'); A('s_memtime s[68:69]'); A('s_waitcnt lgkmcnt(0)'); A('s_sub_u32 s68, s68, s64')
            A('s_cmp_eq_u32 s23, 0'); A('s_cbranch_scc0 L_done')
            A('v_mov_b32 v20, s60'); A('v_mov_b32 v21, s61'); A('v_mov_b32 v22, s66'); A('v_mov_b32 v23, s67')
            A('s_lshl_b32 s44, s2, 4'); A('v_mov_b32 v24, s44')
            A('v_cmp_eq_u32 vcc, 0, v2'); A('s_and_saveexec_b64 s[46:47], vcc'); A('s_cbranch_execz L_done')
            A('global_store_dwordx4 v24, v[20:23], s[62:63]')
            A('v_mov_b32 v25, s68'); A('s_lshl_b32 s44, s2, 2'); A('s_add_u32 s44, s44, 65536'); A('v_mov_b32 v26, s44')
            A('global_store_dword v26, v25, s[62:63]')
        if o.spin:
            A('s_waitcnt vmcnt(0)')
            A('s_cmp_eq_u32 s2, 0'); A('s_cbranch_scc0 L_done')
            A('s_cmp_eq_u32 s23, 0'); A('s_cbranch_scc0 L_done')
            A('s_memrealtime s[66:67]'); A('s_waitcnt lgkmcnt(0)')
            A('s_sub_u32 s44, s66, s60'); A(f's_mul_i32 s44, s44, {o.spin}')
            self.lab('L_spin')
            A('s_memrealtime s[66:67]'); A('s_waitcnt lgkmcnt(0)')
            A('s_sub_u32 s45, s66, s60'); A('s_cmp_lt_u32 s45, s44'); A('s_cbranch_scc1 L_spin')
        if o.dbg:
            A('s_waitcnt vmcnt(0)'); A('s_barrier')
            A('s_memrealtime s[66:67]'); A('s_memtime s[68:69]'); A('s_waitcnt lgkmcnt(0)'); A('s_sub_u32 s68, s68, s64')
            A('s_cmp_eq_u32 s23, 0'); A('s_cbranch_scc0 L_done')
            A('v_cmp_eq_u32 vcc, 0, v2'); A('s_and_saveexec_b64 s[46:47], vcc'); A('s_cbranch_execz L_done')
            A('v_mov_b32 v24, 0')
            if o.dbg == 2:
                A('s_not_b32 s44, s60'); A('v_mov_b32 v20, s44'); A('global_atomic_umax v24, v20, s[18:19]')
                A('v_mov_b32 v21, s66'); A('global_atomic_umax v24, v21, s[18:19] offset:4')
                A('s_sub_u32 s44, s66, s60'); A('v_mov_b32 v22, s44'); A('global_atomic_umax v24, v22, s[18:19] offset:8')
            if o.dbg == 3:
                A('s_lshl_b32 s44, s2, 6'); A('s_add_u32 s44, s44, 131072'); A('v_mov_b32 v24, s44')
                for i, sr in enumerate([60, 70, 72, 74, 76, 78, 80, 82, 66, 68, 84, 86]):
                    A(f'v_mov_b32 v{30+i}, s{sr}'); A(f'global_store_dword v24, v{30+i}, s[62:63] offset:{4*i}')
                A('s_branch L_done')
            A(f's_cmp_eq_u32 s2, {o.dbgwg}'); A('s_cbranch_scc0 L_done')
            A('v_mov_b32 v25, s68'); A('global_store_dword v24, v25, s[18:19] offset:12')
            for i, sr in enumerate([70, 72, 74, 76, 78, 80, 82, 66]):
                A(f's_sub_u32 s44, s{sr}, s60'); A(f'v_mov_b32 v{30+i}, s44'); A(f'global_store_dword v24, v{30+i}, s[18:19] offset:{16+4*i}')
        self.lab('L_done')
        A('s_endpgm')

    def post(self):
        if self.opt.cyc:
            self.L = [l.replace('s_memrealtime s[7', 's_memtime s[7').replace('s_memrealtime s[8', 's_memtime s[8') for l in self.L]
            self.L = [l.replace('s_sub_u32 s44, s70, s60','s_sub_u32 s44, s70, s64').replace('s_sub_u32 s44, s72, s60','s_sub_u32 s44, s72, s64').replace('s_sub_u32 s44, s74, s60','s_sub_u32 s44, s74, s64').replace('s_sub_u32 s44, s76, s60','s_sub_u32 s44, s76, s64').replace('s_sub_u32 s44, s78, s60','s_sub_u32 s44, s78, s64').replace('s_sub_u32 s44, s80, s60','s_sub_u32 s44, s80, s64').replace('s_sub_u32 s44, s82, s60','s_sub_u32 s44, s82, s64') for l in self.L]
    def build(self):
        o = self.opt
        R = self.raw
        R(HEADER.rstrip('\n'))
        R(f'; @launch grid=(256,1,1) block=(512,1,1) lds={LDS_BYTES}')
        R('.amdgcn_target "amdgcn-amd-amdhsa--gfx950"'); R('.text'); R(f'.globl {NAME}'); R('.p2align 8'); R(f'.type {NAME},@function')
        self.lab(NAME)
        self.prologue()
        self.A('s_and_b32 s29, s23, 1'); self.A('s_cmp_eq_u32 s29, 1'); self.A('s_cbranch_scc1 L_cons_hi')
        self.consumer(False)
        self.A('s_branch L_store')
        self.consumer(True)
        self.producer()
        self.store()
        R('.section .rodata,"a"'); R('.p2align 6'); R(f'.amdhsa_kernel {NAME}')
        R('  .amdhsa_next_free_vgpr 256'); R('  .amdhsa_next_free_sgpr 96'); R('  .amdhsa_accum_offset 256')
        R('  .amdhsa_group_segment_fixed_size 0'); R('  .amdhsa_kernarg_size 72'); R('  .amdhsa_user_sgpr_count 2')
        R('  .amdhsa_user_sgpr_kernarg_segment_ptr 1'); R('  .amdhsa_system_sgpr_workgroup_id_x 1'); R('.end_amdhsa_kernel')
        self.post()
        return '\n'.join(self.L) + '\n'

def parse(argv):
    p = argparse.ArgumentParser()
    p.add_argument('-o', default='standalone__batchnorm__sampling.s')
    p.add_argument('--stamp', type=int, default=0)
    p.add_argument('--rot', type=int, default=0)
    p.add_argument('--rotm', type=int, default=2)
    p.add_argument('--rotn', type=int, default=1)
    p.add_argument('--rdspan', type=int, default=48)
    p.add_argument('--xaux', default=''); p.add_argument('--waux', default=''); p.add_argument('--saux', default='')
    p.add_argument('--meta', type=int, default=0)
    p.add_argument('--dbg', type=int, default=0)
    p.add_argument('--pro', type=int, default=1)
    p.add_argument('--pad', type=int, default=0)
    p.add_argument('--jumps', type=int, default=0)
    p.add_argument('--order', type=int, default=0)
    p.add_argument('--spin', type=int, default=0)
    p.add_argument('--nobar', type=int, default=0)
    p.add_argument('--nords', type=int, default=0)
    p.add_argument('--nodma', type=int, default=0)
    p.add_argument('--cyc', type=int, default=0)
    p.add_argument('--dbgwg', type=int, default=0)
    return p.parse_args(argv)

META = '''.amdgpu_metadata
---
amdhsa.version: [1, 2]
amdhsa.kernels:
  - .name: {name}
    .symbol: {name}.kd
    .kernarg_segment_size: 72
    .kernarg_segment_align: 8
    .group_segment_fixed_size: 0
    .private_segment_fixed_size: 0
    .wavefront_size: 64
    .sgpr_count: 102
    .vgpr_count: 256
    .max_flat_workgroup_size: 512
    .args:
      - {{.name: kernargs, .size: 72, .offset: 0, .value_kind: by_value}}
...
.end_amdgpu_metadata
'''
if __name__ == '__main__':
    o = parse(sys.argv[1:])
    s = Gen(o).build()
    if o.meta: s += META.format(name=NAME)
    open(o.o, 'w').write(s)
```

```python
import sys, argparse

NAME = 'standalone__batchnorm__sampling_kernel'
HEADER = open('standalone__batchnorm__sampling.s.ref').read().split('; Override launch')[0]

XSLOT = 32768; NXS = 3
WBASE = XSLOT*NXS; WSLOT = 16384; NWS = 4
LDS_BYTES = WBASE + WSLOT*NWS
ORS = 176
NSTEP = 20
XBYTES = 1024*8*640*2; WBYTES = 3*640*640*2

SETX = [0, 68]; SETW = [32, 100]
V_RAW = 136
V_XA = [160, 161]; V_XB = [162, 163]; V_W = 164
V_OUT = 165
V_TD = 166; V_TO = 167
ACC = 176
E_U = 0; E_E = 20; E_SC = 40; E_SH = 52; E_C = 64

class Gen:
    def __init__(self, opt):
        self.L = []; self.opt = opt; self.tri = 0; self.uid = 0
    def A(self, s): self.L.append('  ' + s)
    def lab(self, s): self.L.append(s + ':')
    def raw(self, s): self.L.append(s)
    def stamp(self, idx):
        if self.opt.dbg == 1: self.A(f's_memrealtime s[{70+2*idx}:{71+2*idx}]')

    def sp(self, name):
        if self.opt.spinpt == name: self.A('s_memrealtime s[92:93]')
    def tr(self, vreg):
        if self.opt.dbg != 2: return
        A = self.A
        i = self.tri
        if i > 0:
            A('s_waitcnt lgkmcnt(0)')
            A(f'v_writelane_b32 v{vreg}, s{88 + 2*((i-1)&1)}, {i-1}')
        A(f's_memrealtime s[{88 + 2*(i&1)}:{89 + 2*(i&1)}]')
        self.tri += 1
    def tr_end(self, vreg, slot):
        if self.opt.dbg != 2: return
        A = self.A
        i = self.tri
        A('s_waitcnt lgkmcnt(0)')
        A(f'v_writelane_b32 v{vreg}, s{88 + 2*((i-1)&1)}, {i-1}')
        A(f'v_writelane_b32 v{vreg}, s60, 63')
        A(f's_cmp_eq_u32 s23, 0'); A(f's_cbranch_scc0 L_trskip{slot}_{self.uid}')
        A('v_mbcnt_lo_u32_b32 v2, -1, 0'); A('v_mbcnt_hi_u32_b32 v2, -1, v2')
        A(f's_lshl_b32 s44, s2, 9'); A(f's_add_u32 s44, s44, {262144 + slot*256}')
        A('v_lshl_add_u32 v2, v2, 2, s44')
        A(f'global_store_dword v2, v{vreg}, s[62:63]')
        self.lab(f'L_trskip{slot}_{self.uid}')
        self.uid += 1
    def div10(self, vrow, vpiece, vsrc):
        A = self.A
        A(f'v_mul_u32_u24 v{vrow}, 6554, v{vsrc}')
        A(f'v_lshrrev_b32 v{vrow}, 16, v{vrow}')
        A(f'v_mul_u32_u24 v{vpiece}, 10, v{vrow}')
        A(f'v_sub_u32 v{vpiece}, v{vsrc}, v{vpiece}')

    def prologue(self):
        A = self.A; o = self.opt
        A('s_cmp_ge_u32 s2, 256'); A('s_cbranch_scc1 L_done')
        A('s_load_dwordx16 s[4:19], s[0:1], 0')
        if o.dbg or o.spinpt:
            A('s_memrealtime s[60:61]'); A('s_memtime s[64:65]')
            A('s_load_dwordx2 s[62:63], s[0:1], 64')
        A('v_lshrrev_b32 v1, 6, v0')
        A('v_and_b32 v0, 63, v0')
        A('s_and_b32 s20, s2, 7')
        A('v_readfirstlane_b32 s23, v1')
        A('s_lshr_b32 s25, s2, 3')
        A('s_lshr_b32 s22, s25, 3')
        A('s_and_b32 s21, s25, 7')
        A('s_lshl_b32 s20, s20, 2')
        A('s_add_u32 s20, s20, s22')
        A('s_mul_i32 s26, s20, 327680')
        A('s_mul_i32 s27, s21, 160')
        if o.touch:
            A('s_and_b32 s29, s23, 1')
            A('s_and_b32 s28, s23, 2')
            A('s_cmp_eq_u32 s28, 0'); A('s_cbranch_scc0 L_touch_w')
            A('s_lshl_b32 s30, s29, 4')
            A('v_add_u32 v3, s30, v0'); A('v_mul_u32_u24 v3, 10240, v3')
            A('s_mul_i32 s30, s21, 1280'); A('v_add_u32 v3, s30, v3')
            A('v_cmp_gt_u32 vcc, 16, v0')
            A('s_mov_b32 s54, s26'); A('s_mov_b32 s55, 128'); A(f's_mov_b32 s58, {XBYTES}')
            A('s_waitcnt lgkmcnt(0)')
            A('s_mov_b32 s56, s4'); A('s_and_b32 s57, s5, 0xffff')
            A('s_branch L_touch_j')
            self.lab('L_touch_w')
            self.div10(3, 4, 0)
            A('s_mul_i32 s30, s25, 6'); A('s_mul_i32 s31, s29, 3'); A('s_add_u32 s30, s30, s31')
            A('v_add_u32 v3, s30, v3')
            A('v_lshrrev_b32 v6, 6, v3')
            A('v_and_b32 v3, 63, v3')
            A('v_mul_u32_u24 v3, 1280, v3')
            A('v_lshl_add_u32 v3, v4, 7, v3')
            A('s_mov_b32 s30, 819200'); A('v_mul_lo_u32 v6, v6, s30'); A('v_add_u32 v3, v3, v6')
            A('v_cmp_gt_u32 vcc, 30, v0')
            A('s_mov_b32 s54, 0'); A('s_mov_b32 s55, 81920'); A(f's_mov_b32 s58, {WBYTES}')
            A('s_waitcnt lgkmcnt(0)')
            A('s_mov_b32 s56, s6'); A('s_and_b32 s57, s7, 0xffff')
            self.lab('L_touch_j')
            A('s_mov_b32 s59, 0x20000')
            A('v_mov_b32 v4, 0x40000000')
            A(f'v_cndmask_b32 v{V_TO}, v4, v3, vcc')
            A('s_lshr_b32 s28, s23, 2'); A('s_mul_i32 s53, s28, s55'); A('s_add_u32 s53, s53, s54')
            for rd in range(o.rounds):
                A(f'buffer_load_dword v{V_TD}, v{V_TO}, s[56:59], s53 offen')
                if rd + 1 < o.rounds:
                    A('s_lshl_b32 s28, s55, 1'); A('s_add_u32 s53, s53, s28')
        A('s_cmp_ge_u32 s23, 4')
        A('s_cbranch_scc1 L_consumer')

    def producer(self):
        A = self.A; o = self.opt
        A('v_lshrrev_b32 v2, 3, v0')
        A('v_lshrrev_b32 v3, 4, v0')
        A('s_and_b32 s29, s23, 1'); A('s_lshl_b32 s29, s29, 2')
        A('v_add_u32 v3, s29, v3')
        A('v_and_b32 v4, 7, v0')
        A('v_xor_b32 v4, v4, v3')
        A('v_mul_u32_u24 v2, 10240, v2')
        A('v_lshl_add_u32 v10, v4, 4, v2')
        for j in range(4):
            A(f's_add_u32 s30, s23, {4*j}')
            A('s_mul_i32 s31, s30, 52'); A('s_lshr_b32 s31, s31, 8')
            A('s_mul_i32 s32, s31, 5'); A('s_sub_u32 s32, s30, s32')
            A('s_lshl_b32 s32, s32, 6')
            A('v_add_u32 v2, s32, v0')
            self.div10(3, 4, 2)
            A('v_bfe_u32 v5, v3, 2, 2'); A('v_lshlrev_b32 v5, 3, v5')
            A('v_lshrrev_b32 v6, 4, v3'); A('v_lshl_add_u32 v5, v6, 2, v5')
            A('v_and_b32 v6, 3, v3'); A('v_add_u32 v5, v5, v6')
            A('v_mul_u32_u24 v5, 1280, v5')
            A('v_lshl_add_u32 v5, v4, 4, v5')
            A('s_mul_i32 s31, s31, 819200')
            if j == 3:
                A('s_cmp_eq_u32 s30, 15'); A('s_cselect_b32 s31, 0x40000000, s31')
            A(f'v_add_u32 v{11+j}, s31, v5')
        A('s_mul_i32 s40, s23, 81920'); A('s_add_u32 s40, s40, s26')
        A('s_lshl_b32 s41, s23, 10')
        A(f's_add_u32 s42, s41, {WBASE}')
        A('s_mov_b32 s34, %d' % XBYTES); A('s_mov_b32 s35, 0x20000')
        A('s_mov_b32 s38, %d' % WBYTES); A('s_mov_b32 s39, 0x20000')
        A('s_waitcnt lgkmcnt(0)')
        A('s_mov_b32 s32, s4'); A('s_and_b32 s33, s5, 0xffff')
        A('s_mov_b32 s36, s6'); A('s_and_b32 s37, s7, 0xffff')
        issued = []
        def issue_x(X, svals):
            slot = X % NXS
            for s in svals:
                A(f's_add_u32 m0, s41, {slot*XSLOT + s*4096}')
                A(f's_add_u32 s46, s40, {X*128 + s*1280}')
                if not o.nodma: A(f'buffer_load_dwordx4 v10, s[32:35], s46 offen {o.xaux} lds')
                issued.append(('x', X))
        def issue_w(t):
            slot = t % NWS
            A(f's_add_u32 s47, s27, {t*32*1280}')
            for j in range(4):
                A(f's_add_u32 m0, s42, {slot*WSLOT + j*4096}')
                if j == 0: pass
                A('s_nop 0')
                if not o.nodma: A(f'buffer_load_dwordx4 v{11+j}, s[36:39], s47 offen {o.waux} lds')
                issued.append(('w', t))
        def need(step):
            req = [i for i, tg in enumerate(issued) if tg == ('x', step >> 1) or tg == ('w', step)]
            n = len(issued) - 1 - max(req)
            A(f's_waitcnt vmcnt({n})')
        R8 = list(range(8))
        self.tri = 0; TR = lambda: self.tr(30)
        if o.touch:
            for rd in range(o.rounds): issued.append(('t', rd))
            if o.tsync:
                A(f's_waitcnt vmcnt({o.rounds - 1})'); A('s_barrier')
        TR()
        sched = {it: [] for it in range(-2, NSTEP)}
        for t in range(NSTEP):
            it = max(t - 4 + o.dw, -2)
            if t == 0: it = -2
            elif t == 1: it = o.w1
            else: it = max(it, -1)
            sched[it].append(('w', t))
        for X in range(10):
            if X == 0: a = b = -2
            else:
                a = max(2*X - 5 + o.dx, -1); b = max(2*X - 4 + o.dx, -1)
            sched[a].append(('x', X, [0, 1, 2, 3])); sched[b].append(('x', X, [4, 5, 6, 7]))
        def prio(e):
            return (e[1] if e[0] == 'w' else 2*e[1], 0 if e[0] == 'w' else 1)
        def run(it):
            for e in sorted(sched[it], key=prio):
                if e[0] == 'w': issue_w(e[1])
                else: issue_x(e[1], e[2])
        run(-2)
        TR()
        need(0); TR(); A('s_barrier')
        run(-1)
        TR()
        need(1); TR(); A('s_barrier')
        for t in range(NSTEP):
            run(t)
            if t == 17:
                self.store_addr()
            if t + 1 < NSTEP:
                TR()
                if t + 2 < NSTEP: need(t + 2)
                TR()
                A('s_barrier')
        for ph in range(4):
            A('s_barrier')
            for j in range(3): A(f'ds_read_b128 v[{40+12*(ph&1)+4*j}:{43+12*(ph&1)+4*j}], v{20+j} offset:{ph*32*ORS}')
            A(f's_add_u32 s46, s45, {ph*1280}')
            for j in range(3):
                A(f's_waitcnt lgkmcnt({2-j})')
                A(f'buffer_store_dwordx4 v[{40+12*(ph&1)+4*j}:{43+12*(ph&1)+4*j}], v{24+j}, s[48:51], s46 offen {o.saux}')
        if o.dbg == 2:
            A('s_waitcnt vmcnt(0)'); TR(); self.tr_end(30, 1)
        self.finish('p')

    def store_addr(self):
        A = self.A
        A('s_mov_b32 s48, s16'); A('s_and_b32 s49, s17, 0xffff'); A(f's_mov_b32 s50, {XBYTES}'); A('s_mov_b32 s51, 0x20000')
        A('s_lshr_b32 s43, s23, 1')
        A('s_and_b32 s44, s23, 1')
        A('s_mul_i32 s45, s43, 5120'); A('s_add_u32 s45, s45, s26'); A('s_add_u32 s45, s45, s27')
        A(f's_mul_i32 s43, s43, {4*32*ORS}')
        A(f's_mul_i32 s52, s44, {16*ORS}'); A('s_add_u32 s43, s43, s52')
        A('s_mul_i32 s44, s44, 163840')
        for j in range(3):
            A(f'v_add_u32 v3, {64*j}, v0')
            if j == 2: A('v_min_u32 v3, 159, v3')
            self.div10(4, 5, 3)
            A(f'v_mul_u32_u24 v6, {ORS}, v4')
            A(f'v_lshl_add_u32 v6, v5, 4, v6')
            A(f'v_add_u32 v{20+j}, s43, v6')
            A(f'v_mul_u32_u24 v6, 10240, v4')
            A(f'v_lshl_add_u32 v6, v5, 4, v6')
            A(f'v_add_u32 v{24+j}, s44, v6')
            if j == 2:
                A('v_cmp_gt_u32 vcc, 32, v0')
                A('v_mov_b32 v7, 0x40000000')
                A('s_nop 0')
                A(f'v_cndmask_b32 v{24+j}, v7, v{24+j}, vcc')

    def finish(self, tag):
        A = self.A; o = self.opt
        if o.dbg == 1 and tag != 'p':
            A('s_barrier')
            A('s_memrealtime s[66:67]'); A('s_memtime s[68:69]'); A('s_waitcnt lgkmcnt(0)'); A('s_sub_u32 s68, s68, s64')
            A('s_cmp_eq_u32 s23, 0'); A('s_cbranch_scc0 L_done')
            A('v_mbcnt_lo_u32_b32 v2, -1, 0'); A('v_mbcnt_hi_u32_b32 v2, -1, v2')
            A('v_cmp_eq_u32 vcc, 0, v2'); A('s_and_saveexec_b64 s[46:47], vcc'); A('s_cbranch_execz L_done')
            A('s_lshl_b32 s44, s2, 6'); A('s_add_u32 s44, s44, 131072'); A('v_mov_b32 v24, s44')
            for i, sr in enumerate([60, 70, 72, 74, 76, 78, 80, 82, 66, 68, 84, 86]):
                A(f'v_mov_b32 v{30+i}, s{sr}'); A(f'global_store_dword v24, v{30+i}, s[62:63] offset:{4*i}')
        elif o.dbg == 1:
            A('s_waitcnt vmcnt(0)'); A('s_barrier')
        A('s_endpgm')

    def mfma_list(self, hi):
        out = []
        for s_in in range(8):
            for k in range(3):
                s_out = s_in + 1 - k
                if not 0 <= s_out < 8: continue
                out.append((s_out, (k, 0), s_in))
                out.append((8 + s_out, (k, 1), s_in))
                if (not hi and s_out < 4): out.append((16 + s_out, (k, 2), s_in))
                if (hi and s_out >= 4): out.append((16 + s_out - 4, (k, 2), s_in))
        assert len(out) == 55
        od = self.opt.order
        sval = lambda b: (b % 8) if b < 16 else (b - 16 + (4 if hi else 0))
        if od == 1: out.sort(key=lambda e: (e[1][0], e[1][1], e[2]))
        elif od == 2: out.sort(key=lambda e: (e[0], e[1][0]))
        elif od == 3: out.sort(key=lambda e: (sval(e[0]), e[1][1], e[1][0]))
        return out
    def ncols(self, hi): return [3, 4, 2] if hi else [0, 1, 2]
    def reads(self, step, hi):
        st = step & 1
        xs = (step >> 1) % NXS; kk = step & 1; ws = step % NWS
        nc = self.ncols(hi)
        xr = []
        for s in range(8):
            va = (V_XA if xs < 2 else V_XB)[kk]
            off = (xs*XSLOT if xs < 2 else 0) + s*4096
            d = SETX[st] + 4*s
            xr.append(f'ds_read_b128 v[{d}:{d+3}], v{va} offset:{off}')
        wr = []
        for k in range(3):
            for g in range(3):
                for u in range(2):
                    d = SETW[st] + (k*3 + g)*4 + 2*u
                    off = ws*WSLOT + k*5120 + u*2560 + nc[g]*32
                    wr.append(f'ds_read_b64_tr_b16 v[{d}:{d+1}], v{V_W} offset:{off}')
        r = []
        while xr or wr:
            if wr: r.append(wr.pop(0))
            if wr: r.append(wr.pop(0))
            if xr: r.append(xr.pop(0))
        return r
    def params_code(self):
        c = []
        c.append(f'v_mov_b32 v{E_C}, s31'); c.append(f'v_mov_b32 v{E_C+1}, s31')
        T = 0
        for g in range(3):
            def unp(dst, pi):
                for j in range(4):
                    src = V_RAW + pi*6 + g*2 + (j >> 1)
                    if j & 1: c.append(f'v_and_b32 v{dst+j}, 0xffff0000, v{src}')
                    else: c.append(f'v_lshlrev_b32 v{dst+j}, 16, v{src}')
            M, V, G, B = T, T+4, T+8, T+12
            unp(V, 1); unp(G, 2); unp(M, 0); unp(B, 3)
            for j in range(4): c.append(f'v_add_f32 v{V+j}, s30, v{V+j}')
            for j in range(4): c.append(f'v_rsq_f32 v{V+j}, v{V+j}')
            sc = E_SC + 4*g; sh = E_SH + 4*g
            for p in (0, 2): c.append(f'v_pk_mul_f32 v[{G+p}:{G+p+1}], v[{G+p}:{G+p+1}], v[{E_C}:{E_C+1}]')
            for p in (0, 2): c.append(f'v_pk_mul_f32 v[{B+p}:{B+p+1}], v[{B+p}:{B+p+1}], v[{E_C}:{E_C+1}]')
            for p in (0, 2): c.append(f'v_pk_mul_f32 v[{sc+p}:{sc+p+1}], v[{G+p}:{G+p+1}], v[{V+p}:{V+p+1}]')
            for p in (0, 2): c.append(f'v_pk_fma_f32 v[{sh+p}:{sh+p+1}], v[{M+p}:{M+p+1}], v[{sc+p}:{sc+p+1}], v[{B+p}:{B+p+1}] neg_lo:[1,0,0] neg_hi:[1,0,0]')
        return c
    def touch(self, chunk):
        return [f's_mul_i32 s53, s55, {chunk}', 's_add_u32 s53, s53, s54',
                f'buffer_load_dword v{V_TD}, v{V_TO}, s[56:59], s53 offen']
    def tsched(self):
        o = self.opt; d = {}
        if not o.touch: return d
        for e in o.ts.split(','):
            p, c = e.split(':'); d.setdefault(p, []).append(int(c))
        return d
    def consumer_setup(self):
        A = self.A; o = self.opt
        self.lab('L_consumer')
        A('s_sub_u32 s23, s23, 4')
        A('s_lshr_b32 s28, s23, 1')
        A('v_and_b32 v1, 15, v0')
        A('v_lshrrev_b32 v2, 4, v0')
        A('v_lshrrev_b32 v3, 1, v1')
        A('v_xor_b32 v3, v3, v2')
        A('v_lshlrev_b32 v3, 4, v3')
        A('v_lshl_add_u32 v3, v1, 7, v3')
        A('s_lshl_b32 s29, s28, 11')
        A(f'v_add_u32 v{V_XA[0]}, s29, v3')
        A(f'v_xor_b32 v{V_XA[1]}, 64, v{V_XA[0]}')
        A(f'v_add_u32 v{V_XB[0]}, 0x10000, v{V_XA[0]}')
        A(f'v_add_u32 v{V_XB[1]}, 0x10000, v{V_XA[1]}')
        A('v_lshrrev_b32 v3, 2, v1')
        A('v_lshl_add_u32 v3, v2, 2, v3')
        A('v_mul_u32_u24 v3, 160, v3')
        A('v_and_b32 v4, 3, v1')
        A('v_lshl_add_u32 v3, v4, 3, v3')
        A(f'v_add_u32 v{V_W}, {WBASE}, v3')
        A('s_lshl_b32 s29, s28, 4')
        A('v_add_u32 v3, s29, v1')
        A(f'v_mul_u32_u24 v3, {ORS}, v3')
        A(f'v_lshl_add_u32 v{V_OUT}, v2, 3, v3')
        A('v_lshlrev_b32 v5, 3, v2')
        A('v_add_u32 v5, s27, v5')
        A('s_waitcnt lgkmcnt(0)')
        A('s_and_b32 s29, s23, 1'); A('s_cmp_eq_u32 s29, 1'); A('s_cbranch_scc1 L_cons_hi')

    def consumer(self, hi):
        A = self.A; o = self.opt
        tag = 'hi' if hi else 'lo'
        self.lab(f'L_cons_{tag}')
        nc = self.ncols(hi)
        for pi, sp in enumerate([8, 10, 12, 14]):
            for g in range(3):
                d = V_RAW + pi*6 + g*2
                A(f'global_load_dwordx2 v[{d}:{d+1}], v5, s[{sp}:{sp+1}] offset:{nc[g]*32}')
        ts = self.tsched()
        for ch in ts.get('P', []):
            for ins in self.touch(ch): A(ins)
        if o.tsync: A('s_barrier')
        self.sp('T')
        for ch in ts.get('T', []):
            for ins in self.touch(ch): A(ins)
        A('s_mov_b32 s30, 0x3727c5ac')
        A('s_mov_b32 s31, 0xbfb8aa3b')
        if o.prio: A(f's_setprio {o.prio}')
        self.tri = 0; TR = lambda: self.tr(168)
        self.stamp(0); TR()
        A('s_barrier')
        self.stamp(1); TR(); self.sp('Bm1')
        for ch in ts.get('M', []):
            for ins in self.touch(ch): A(ins)
        for r in self.reads(0, hi): A(r)
        A('s_waitcnt lgkmcnt(0)')
        A('s_barrier')
        self.stamp(2); TR(); self.sp('B0')
        ml = self.mfma_list(hi)
        for t in range(NSTEP):
            st = t & 1
            fill = []
            if t + 1 < NSTEP and not o.nords: fill = self.reads(t + 1, hi)
            span = o.rdspan
            extra = []
            for ch in ts.get(str(t), []): extra += self.touch(ch)
            if t == NSTEP - 1:
                fill = ['s_waitcnt vmcnt(0)'] + self.params_code(); span = 54
            seen = set(); ri = 0
            for mi, (blk, (k, g), s_in) in enumerate(ml):
                a = ACC + 4*blk
                w = SETW[st] + (k*3 + g)*4; x = SETX[st] + 4*s_in
                c = f'v[{a}:{a+3}]'
                if t == 0 and blk not in seen: c = '0'
                seen.add(blk)
                A(f'v_mfma_f32_16x16x32_bf16 v[{a}:{a+3}], v[{w}:{w+3}], v[{x}:{x+3}], {c}')
                due = (mi + 1) * len(fill) // span if fill else 0
                while ri < min(due, len(fill)):
                    A(fill[ri]); ri += 1
                if mi == o.tpos:
                    for ins in extra: A(ins)
            assert ri == len(fill)
            if t + 1 < NSTEP:
                A('s_waitcnt lgkmcnt(0)')
                A('s_barrier')
                TR(); self.sp(f'B{t+1}')
                if t in (3, 9): self.stamp(3 if t == 3 else 4)
                if o.dbg == 1 and t == 9: A('s_memtime s[84:85]')
        self.stamp(5); TR(); self.sp('lend')
        if o.dbg == 1: A('s_memtime s[86:87]')
        A('s_nop 7')
        for ph in range(4):
            blks = []
            for s in (ph, ph + 4):
                for g in range(3):
                    if g == 2 and ((s >= 4) != hi): continue
                    blk = (g*8 + s) if g < 2 else 16 + (s - 4 if hi else s)
                    blks.append((blk, g, s))
            assert len(blks) == 5
            for bi, (blk, g, s) in enumerate(blks):
                a = ACC + 4*blk; U = E_U + 4*bi; sc = E_SC + 4*g; sh = E_SH + 4*g
                for p in (0, 2): A(f'v_pk_fma_f32 v[{U+p}:{U+p+1}], v[{a+p}:{a+p+1}], v[{sc+p}:{sc+p+1}], v[{sh+p}:{sh+p+1}]')
            for i in range(20): A(f'v_exp_f32 v{E_E+i}, v{E_U+i}')
            for i in range(0, 20, 2): A(f'v_pk_fma_f32 v[{E_E+i}:{E_E+i+1}], v[{E_E+i}:{E_E+i+1}], v[{E_C}:{E_C+1}], v[{E_C}:{E_C+1}]')
            for i in range(20): A(f'v_rcp_f32 v{E_E+i}, v{E_E+i}')
            for i in range(0, 20, 2): A(f'v_pk_mul_f32 v[{E_U+i}:{E_U+i+1}], v[{E_U+i}:{E_U+i+1}], v[{E_E+i}:{E_E+i+1}]')
            for bi, (blk, g, s) in enumerate(blks):
                U = E_U + 4*bi; E = E_E + 4*bi
                A(f'v_cvt_pk_bf16_f32 v{E}, v{U}, v{U+1}')
                A(f'v_cvt_pk_bf16_f32 v{E+1}, v{U+2}, v{U+3}')
                A(f'ds_write_b64 v{V_OUT}, v[{E}:{E+1}] offset:{s*32*ORS + nc[g]*32}')
            A('s_waitcnt lgkmcnt(0)')
            if ph == 3: self.stamp(6)
            A('s_barrier')
            TR()
        self.tr_end(168, 0)
        self.sp('E3')
        if o.spinpt:
            A('s_cmp_eq_u32 s2, 0'); A('s_cbranch_scc0 L_done')
            A('s_cmp_eq_u32 s23, 0'); A('s_cbranch_scc0 L_done')
            A('s_waitcnt lgkmcnt(0)')
            A('s_sub_u32 s44, s92, s60'); A(f's_mul_i32 s44, s44, {o.spinm}')
            self.lab(f'L_spin_{tag}')
            A('s_memrealtime s[66:67]'); A('s_waitcnt lgkmcnt(0)')
            A('s_sub_u32 s45, s66, s60'); A('s_cmp_lt_u32 s45, s44'); A(f's_cbranch_scc1 L_spin_{tag}')
        self.finish(tag)

    def build(self):
        o = self.opt; R = self.raw
        R(HEADER.rstrip('\n'))
        R(f'; @launch grid=(256,1,1) block=(512,1,1) lds={LDS_BYTES}')
        R('.amdgcn_target "amdgcn-amd-amdhsa--gfx950"'); R('.text'); R(f'.globl {NAME}'); R('.p2align 8'); R(f'.type {NAME},@function')
        self.lab(NAME)
        self.prologue()
        self.producer()
        R('.p2align 6')
        self.consumer_setup()
        self.consumer(False)
        R('.p2align 6')
        self.consumer(True)
        self.lab('L_done')
        self.A('s_endpgm')
        R('.section .rodata,"a"'); R('.p2align 6'); R(f'.amdhsa_kernel {NAME}')
        R('  .amdhsa_next_free_vgpr 256'); R('  .amdhsa_next_free_sgpr 96'); R('  .amdhsa_accum_offset 256')
        R('  .amdhsa_group_segment_fixed_size 0'); R('  .amdhsa_kernarg_size 72'); R('  .amdhsa_user_sgpr_count 2')
        R('  .amdhsa_user_sgpr_kernarg_segment_ptr 1'); R('  .amdhsa_system_sgpr_workgroup_id_x 1'); R('.end_amdhsa_kernel')
        return '\n'.join(self.L) + '\n'

def parse(argv):
    p = argparse.ArgumentParser()
    p.add_argument('-o', default='standalone__batchnorm__sampling.s')
    for k, v in dict(dbg=0, rdspan=48, order=2, pro=1, nords=0, nodma=0, touch=1, rounds=1, tsync=1, dw=0, dx=0, w1=-1, tpos=2, prio=0, meta=0).items():
        p.add_argument('--' + k, type=int, default=v)
    p.add_argument('--ts', default='T:2,0:3,2:4,4:5,6:6,8:7,10:8,12:9')
    p.add_argument('--spinpt', default=''); p.add_argument('--spinm', type=int, default=20)
    p.add_argument('--xaux', default=''); p.add_argument('--waux', default=''); p.add_argument('--saux', default='')
    return p.parse_args(argv)

from gen import META
if __name__ == '__main__':
    o = parse(sys.argv[1:])
    s = Gen(o).build()
    if o.meta: s += META.format(name=NAME)
    open(o.o, 'w').write(s)
```

```python
import sys, argparse

NAME = 'standalone__batchnorm__sampling_kernel'
HEADER = open('standalone__batchnorm__sampling.s.ref').read().split('; Override launch')[0]

XSLOT = 32768; NXS = 3
WBASE = XSLOT*NXS; WSLOT = 16384; NWS = 4
LDS_BYTES = WBASE + WSLOT*NWS
ORS = 176
NSTEP = 20
XBYTES = 1024*8*640*2; WBYTES = 3*640*640*2

SETX = [0, 68]; SETW = [32, 100]
V_RAW = 136
V_XA = [160, 161]; V_XB = [162, 163]; V_W = 164
V_OUT = 165
V_TD = 166; V_TO = 167
ACC = 176
E_U = 0; E_E = 20; E_SC = 40; E_SH = 52; E_C = 64

class Gen:
    def __init__(self, opt):
        self.L = []; self.opt = opt; self.tri = 0; self.uid = 0
    def A(self, s): self.L.append('  ' + s)
    def lab(self, s): self.L.append(s + ':')
    def raw(self, s): self.L.append(s)
    def stamp(self, idx):
        if self.opt.dbg == 1: self.A(f's_memrealtime s[{70+2*idx}:{71+2*idx}]')

    def sp(self, name):
        if self.opt.spinpt == name: self.A('s_memrealtime s[92:93]')
    def tr(self, vreg):
        if self.opt.dbg != 2: return
        A = self.A
        i = self.tri
        if i > 0:
            A('s_waitcnt lgkmcnt(0)')
            A(f'v_writelane_b32 v{vreg}, s{88 + 2*((i-1)&1)}, {i-1}')
        A(f's_memrealtime s[{88 + 2*(i&1)}:{89 + 2*(i&1)}]')
        self.tri += 1
    def tr_end(self, vreg, slot):
        if self.opt.dbg != 2: return
        A = self.A
        i = self.tri
        A('s_waitcnt lgkmcnt(0)')
        A(f'v_writelane_b32 v{vreg}, s{88 + 2*((i-1)&1)}, {i-1}')
        A(f'v_writelane_b32 v{vreg}, s60, 63')
        A(f's_cmp_eq_u32 s23, 0'); A(f's_cbranch_scc0 L_trskip{slot}_{self.uid}')
        A('v_mbcnt_lo_u32_b32 v2, -1, 0'); A('v_mbcnt_hi_u32_b32 v2, -1, v2')
        A(f's_lshl_b32 s44, s2, 9'); A(f's_add_u32 s44, s44, {262144 + slot*256}')
        A('v_lshl_add_u32 v2, v2, 2, s44')
        A(f'global_store_dword v2, v{vreg}, s[62:63]')
        self.lab(f'L_trskip{slot}_{self.uid}')
        self.uid += 1
    def div10(self, vrow, vpiece, vsrc):
        A = self.A
        A(f'v_mul_u32_u24 v{vrow}, 6554, v{vsrc}')
        A(f'v_lshrrev_b32 v{vrow}, 16, v{vrow}')
        A(f'v_mul_u32_u24 v{vpiece}, 10, v{vrow}')
        A(f'v_sub_u32 v{vpiece}, v{vsrc}, v{vpiece}')

    def prologue(self):
        A = self.A; o = self.opt
        A('s_cmp_ge_u32 s2, 256'); A('s_cbranch_scc1 L_done')
        A('s_load_dwordx16 s[4:19], s[0:1], 0')
        if o.dbg or o.spinpt:
            A('s_memrealtime s[60:61]'); A('s_memtime s[64:65]')
            A('s_load_dwordx2 s[62:63], s[0:1], 64')
        A('v_lshrrev_b32 v1, 6, v0')
        A('v_and_b32 v0, 63, v0')
        A('s_and_b32 s20, s2, 7')
        A('v_readfirstlane_b32 s23, v1')
        A('s_lshr_b32 s25, s2, 3')
        A('s_lshr_b32 s22, s25, 3')
        A('s_and_b32 s21, s25, 7')
        A('s_lshl_b32 s20, s20, 2')
        A('s_add_u32 s20, s20, s22')
        A('s_mul_i32 s26, s20, 327680')
        A('s_mul_i32 s27, s21, 160')
        if o.touch:
            A('s_and_b32 s29, s23, 1')
            A('s_and_b32 s28, s23, 2')
            A('s_cmp_eq_u32 s28, 0'); A('s_cbranch_scc0 L_touch_w')
            A('s_lshl_b32 s30, s29, 4')
            A('v_add_u32 v3, s30, v0'); A('v_mul_u32_u24 v3, 10240, v3')
            A('s_mul_i32 s30, s21, 1280'); A('v_add_u32 v3, s30, v3')
            A('v_cmp_gt_u32 vcc, 16, v0')
            A('s_mov_b32 s54, s26'); A('s_mov_b32 s55, 128'); A(f's_mov_b32 s58, {XBYTES}')
            A('s_waitcnt lgkmcnt(0)')
            A('s_mov_b32 s56, s4'); A('s_and_b32 s57, s5, 0xffff')
            A('s_branch L_touch_j')
            self.lab('L_touch_w')
            self.div10(3, 4, 0)
            if o.wmode == 2:
                A('s_lshl_b32 s30, s2, 3'); A('s_lshl_b32 s31, s29, 1'); A('s_add_u32 s30, s30, s31')
                A('s_lshr_b32 s31, s23, 2'); A('s_lshl_b32 s31, s31, 2'); A('s_add_u32 s30, s30, s31')
                A('v_add_u32 v5, s30, v3')
                A('v_mul_u32_u24 v5, 1280, v5')
                A('v_lshl_add_u32 v5, v4, 7, v5')
                A('v_cmp_gt_u32 vcc, 20, v0')
                A('v_mov_b32 v6, 0x40000000')
                A('s_nop 0')
                A('v_cndmask_b32 v169, v6, v5, vcc')
            if o.wmode in (0, 2):
                A('s_mul_i32 s30, s25, 6'); A('s_mul_i32 s31, s29, 3'); A('s_add_u32 s30, s30, s31')
                A('v_add_u32 v3, s30, v3')
                A('v_lshrrev_b32 v6, 6, v3')
                A('v_and_b32 v3, 63, v3')
                A('v_mul_u32_u24 v3, 1280, v3')
                A('v_lshl_add_u32 v3, v4, 7, v3')
                A('s_mov_b32 s30, 819200'); A('v_mul_lo_u32 v6, v6, s30'); A('v_add_u32 v3, v3, v6')
                A('v_cmp_gt_u32 vcc, 30, v0')
                A('s_mov_b32 s54, 0'); A('s_mov_b32 s55, 81920'); A(f's_mov_b32 s58, {WBYTES}')
            else:
                A('s_lshl_b32 s30, s2, 3'); A('s_lshl_b32 s31, s29, 1'); A('s_add_u32 s30, s30, s31')
                A('s_lshr_b32 s31, s23, 2'); A('s_lshl_b32 s31, s31, 2'); A('s_add_u32 s30, s30, s31')
                A('v_add_u32 v3, s30, v3')
                A('v_mul_u32_u24 v3, 1280, v3')
                A('v_lshl_add_u32 v3, v4, 7, v3')
                A('v_cmp_gt_u32 vcc, 20, v0')
                A('s_mov_b32 s54, 0'); A('s_mov_b32 s55, 0x4000000'); A(f's_mov_b32 s58, {WBYTES}')
            A('s_waitcnt lgkmcnt(0)')
            A('s_mov_b32 s56, s6'); A('s_and_b32 s57, s7, 0xffff')
            if o.wmode == 2:
                A('s_mov_b32 s59, 0x20000')
                A(f'buffer_load_dword v{V_TD}, v169, s[56:59], 0 offen')
            self.lab('L_touch_j')
            A('s_mov_b32 s59, 0x20000')
            A('v_mov_b32 v4, 0x40000000')
            A(f'v_cndmask_b32 v{V_TO}, v4, v3, vcc')
            A('s_lshr_b32 s28, s23, 2'); A('s_mul_i32 s53, s28, s55'); A('s_add_u32 s53, s53, s54')
            if o.wmode == 1:
                A('s_cmp_eq_u32 s55, 128'); A('s_cselect_b32 s53, s53, 0')
            for rd in range(o.rounds):
                A(f'buffer_load_dword v{V_TD}, v{V_TO}, s[56:59], s53 offen {o.taux}')
                if rd + 1 < o.rounds:
                    A('s_lshl_b32 s28, s55, 1'); A('s_add_u32 s53, s53, s28')
        A('s_cmp_ge_u32 s23, 4')
        A('s_cbranch_scc1 L_consumer')

    def producer(self):
        A = self.A; o = self.opt
        A('v_lshrrev_b32 v2, 3, v0')
        A('v_lshrrev_b32 v3, 4, v0')
        A('s_and_b32 s29, s23, 1'); A('s_lshl_b32 s29, s29, 2')
        A('v_add_u32 v3, s29, v3')
        A('v_and_b32 v4, 7, v0')
        A('v_xor_b32 v4, v4, v3')
        A('v_mul_u32_u24 v2, 10240, v2')
        A('v_lshl_add_u32 v10, v4, 4, v2')
        for j in range(4):
            A(f's_add_u32 s30, s23, {4*j}')
            A('s_mul_i32 s31, s30, 52'); A('s_lshr_b32 s31, s31, 8')
            A('s_mul_i32 s32, s31, 5'); A('s_sub_u32 s32, s30, s32')
            A('s_lshl_b32 s32, s32, 6')
            A('v_add_u32 v2, s32, v0')
            self.div10(3, 4, 2)
            A('v_bfe_u32 v5, v3, 2, 2'); A('v_lshlrev_b32 v5, 3, v5')
            A('v_lshrrev_b32 v6, 4, v3'); A('v_lshl_add_u32 v5, v6, 2, v5')
            A('v_and_b32 v6, 3, v3'); A('v_add_u32 v5, v5, v6')
            A('v_mul_u32_u24 v5, 1280, v5')
            A('v_lshl_add_u32 v5, v4, 4, v5')
            A('s_mul_i32 s31, s31, 819200')
            if j == 3:
                A('s_cmp_eq_u32 s30, 15'); A('s_cselect_b32 s31, 0x40000000, s31')
            A(f'v_add_u32 v{11+j}, s31, v5')
        A('s_mul_i32 s40, s23, 81920'); A('s_add_u32 s40, s40, s26')
        A('s_lshl_b32 s41, s23, 10')
        A(f's_add_u32 s42, s41, {WBASE}')
        A('s_mov_b32 s34, %d' % XBYTES); A('s_mov_b32 s35, 0x20000')
        A('s_mov_b32 s38, %d' % WBYTES); A('s_mov_b32 s39, 0x20000')
        A('s_waitcnt lgkmcnt(0)')
        A('s_mov_b32 s32, s4'); A('s_and_b32 s33, s5, 0xffff')
        A('s_mov_b32 s36, s6'); A('s_and_b32 s37, s7, 0xffff')
        issued = []
        def issue_x(X, svals):
            slot = X % NXS
            for s in svals:
                A(f's_add_u32 m0, s41, {slot*XSLOT + s*4096}')
                A(f's_add_u32 s46, s40, {X*128 + s*1280}')
                if not o.nodma: A(f'buffer_load_dwordx4 v10, s[32:35], s46 offen {o.xaux} lds')
                issued.append(('x', X))
        def issue_w(t):
            slot = t % NWS
            A(f's_add_u32 s47, s27, {t*32*1280}')
            for j in range(4):
                A(f's_add_u32 m0, s42, {slot*WSLOT + j*4096}')
                if j == 0: pass
                A('s_nop 0')
                if not o.nodma: A(f'buffer_load_dwordx4 v{11+j}, s[36:39], s47 offen {o.waux} lds')
                issued.append(('w', t))
        def need(step):
            req = [i for i, tg in enumerate(issued) if tg == ('x', step >> 1) or tg == ('w', step)]
            n = len(issued) - 1 - max(req)
            A(f's_waitcnt vmcnt({n})')
        R8 = list(range(8))
        self.tri = 0; TR = lambda: self.tr(30)
        if o.touch:
            for rd in range(o.rounds): issued.append(('t', rd))
            assert not (o.wmode == 2 and o.tsync)
            if o.tsync:
                A(f's_waitcnt vmcnt({o.rounds - 1})'); A('s_barrier')
        TR()
        sched = {it: [] for it in range(-2, NSTEP)}
        ov = dict((e.split(':')[0], int(e.split(':')[1])) for e in o.ov.split(',') if e)
        for t in range(NSTEP):
            it = max(t - 4 + o.dw, -2)
            if t == 0: it = -2
            elif t == 1: it = o.w1
            else: it = max(it, -1)
            it = ov.get(f'w{t}', it)
            assert it >= t - 4 or t < 4
            assert it <= t - 2 or t < 2
            sched[it].append(('w', t))
        for X in range(10):
            if X == 0: a = b = -2
            else:
                a = max(2*X - 5 + o.dx, -1); b = max(2*X - 4 + o.dx, -1)
            a = ov.get(f'x{X}a', a); b = ov.get(f'x{X}b', b)
            assert X < 3 or min(a, b) >= 2*X - 5
            assert X == 0 or max(a, b) <= 2*X - 2
            sched[a].append(('x', X, [0, 1, 2, 3])); sched[b].append(('x', X, [4, 5, 6, 7]))
        def prio(e):
            return (e[1] if e[0] == 'w' else 2*e[1], 0 if e[0] == 'w' else 1)
        pts = self.tsched() if o.tby == 'p' else {}
        def run(it):
            for e in sorted(sched[it], key=prio):
                if e[0] == 'w': issue_w(e[1])
                else: issue_x(e[1], e[2])
            key = {-2: 'T', -1: 'M'}.get(it, str(it))
            for ch in pts.get(key, []):
                for ins in self.touch(ch): A(ins)
                issued.append(('t', 100 + ch))
        run(-2)
        TR()
        need(0); TR(); A('s_barrier')
        run(-1)
        TR()
        need(1); TR(); A('s_barrier')
        for t in range(NSTEP):
            run(t)
            if t == 17:
                self.store_addr()
            if t + 1 < NSTEP:
                TR()
                if t + 2 < NSTEP: need(t + 2)
                TR()
                A('s_barrier')
        for ph in range(4):
            A('s_barrier')
            for j in range(3): A(f'ds_read_b128 v[{40+12*(ph&1)+4*j}:{43+12*(ph&1)+4*j}], v{20+j} offset:{ph*32*ORS}')
            A(f's_add_u32 s46, s45, {ph*1280}')
            for j in range(3):
                A(f's_waitcnt lgkmcnt({2-j})')
                A(f'buffer_store_dwordx4 v[{40+12*(ph&1)+4*j}:{43+12*(ph&1)+4*j}], v{24+j}, s[48:51], s46 offen {o.saux}')
        if o.dbg == 2:
            A('s_waitcnt vmcnt(0)'); TR(); self.tr_end(30, 1)
        self.finish('p')

    def store_addr(self):
        A = self.A
        A('s_mov_b32 s48, s16'); A('s_and_b32 s49, s17, 0xffff'); A(f's_mov_b32 s50, {XBYTES}'); A('s_mov_b32 s51, 0x20000')
        A('s_lshr_b32 s43, s23, 1')
        A('s_and_b32 s44, s23, 1')
        A('s_mul_i32 s45, s43, 5120'); A('s_add_u32 s45, s45, s26'); A('s_add_u32 s45, s45, s27')
        A(f's_mul_i32 s43, s43, {4*32*ORS}')
        A(f's_mul_i32 s52, s44, {16*ORS}'); A('s_add_u32 s43, s43, s52')
        A('s_mul_i32 s44, s44, 163840')
        for j in range(3):
            A(f'v_add_u32 v3, {64*j}, v0')
            if j == 2: A('v_min_u32 v3, 159, v3')
            self.div10(4, 5, 3)
            A(f'v_mul_u32_u24 v6, {ORS}, v4')
            A(f'v_lshl_add_u32 v6, v5, 4, v6')
            A(f'v_add_u32 v{20+j}, s43, v6')
            A(f'v_mul_u32_u24 v6, 10240, v4')
            A(f'v_lshl_add_u32 v6, v5, 4, v6')
            A(f'v_add_u32 v{24+j}, s44, v6')
            if j == 2:
                A('v_cmp_gt_u32 vcc, 32, v0')
                A('v_mov_b32 v7, 0x40000000')
                A('s_nop 0')
                A(f'v_cndmask_b32 v{24+j}, v7, v{24+j}, vcc')

    def finish(self, tag):
        A = self.A; o = self.opt
        if o.dbg == 1 and tag != 'p':
            A('s_barrier')
            A('s_memrealtime s[66:67]'); A('s_memtime s[68:69]'); A('s_waitcnt lgkmcnt(0)'); A('s_sub_u32 s68, s68, s64')
            A('s_cmp_eq_u32 s23, 0'); A('s_cbranch_scc0 L_done')
            A('v_mbcnt_lo_u32_b32 v2, -1, 0'); A('v_mbcnt_hi_u32_b32 v2, -1, v2')
            A('v_cmp_eq_u32 vcc, 0, v2'); A('s_and_saveexec_b64 s[46:47], vcc'); A('s_cbranch_execz L_done')
            A('s_lshl_b32 s44, s2, 6'); A('s_add_u32 s44, s44, 131072'); A('v_mov_b32 v24, s44')
            for i, sr in enumerate([60, 70, 72, 74, 76, 78, 80, 82, 66, 68, 84, 86]):
                A(f'v_mov_b32 v{30+i}, s{sr}'); A(f'global_store_dword v24, v{30+i}, s[62:63] offset:{4*i}')
        elif o.dbg == 1:
            A('s_waitcnt vmcnt(0)'); A('s_barrier')
        A('s_endpgm')

    def mfma_list(self, hi):
        out = []
        for s_in in range(8):
            for k in range(3):
                s_out = s_in + 1 - k
                if not 0 <= s_out < 8: continue
                out.append((s_out, (k, 0), s_in))
                out.append((8 + s_out, (k, 1), s_in))
                if (not hi and s_out < 4): out.append((16 + s_out, (k, 2), s_in))
                if (hi and s_out >= 4): out.append((16 + s_out - 4, (k, 2), s_in))
        assert len(out) == 55
        od = self.opt.order
        sval = lambda b: (b % 8) if b < 16 else (b - 16 + (4 if hi else 0))
        if od == 1: out.sort(key=lambda e: (e[1][0], e[1][1], e[2]))
        elif od == 2: out.sort(key=lambda e: (e[0], e[1][0]))
        elif od == 3: out.sort(key=lambda e: (sval(e[0]), e[1][1], e[1][0]))
        return out
    def ncols(self, hi): return [3, 4, 2] if hi else [0, 1, 2]
    def reads(self, step, hi):
        st = step & 1
        xs = (step >> 1) % NXS; kk = step & 1; ws = step % NWS
        nc = self.ncols(hi)
        xr = []
        for s in range(8):
            va = (V_XA if xs < 2 else V_XB)[kk]
            off = (xs*XSLOT if xs < 2 else 0) + s*4096
            d = SETX[st] + 4*s
            xr.append(f'ds_read_b128 v[{d}:{d+3}], v{va} offset:{off}')
        wr = []
        for k in range(3):
            for g in range(3):
                for u in range(2):
                    d = SETW[st] + (k*3 + g)*4 + 2*u
                    off = ws*WSLOT + k*5120 + u*2560 + nc[g]*32
                    wr.append(f'ds_read_b64_tr_b16 v[{d}:{d+1}], v{V_W} offset:{off}')
        r = []
        while xr or wr:
            if wr: r.append(wr.pop(0))
            if wr: r.append(wr.pop(0))
            if xr: r.append(xr.pop(0))
        return r
    def params_code(self):
        c = []
        c.append(f'v_mov_b32 v{E_C}, s31'); c.append(f'v_mov_b32 v{E_C+1}, s31')
        T = 0
        for g in range(3):
            def unp(dst, pi):
                for j in range(4):
                    src = V_RAW + pi*6 + g*2 + (j >> 1)
                    if j & 1: c.append(f'v_and_b32 v{dst+j}, 0xffff0000, v{src}')
                    else: c.append(f'v_lshlrev_b32 v{dst+j}, 16, v{src}')
            M, V, G, B = T, T+4, T+8, T+12
            unp(V, 1); unp(G, 2); unp(M, 0); unp(B, 3)
            for j in range(4): c.append(f'v_add_f32 v{V+j}, s30, v{V+j}')
            for j in range(4): c.append(f'v_rsq_f32 v{V+j}, v{V+j}')
            sc = E_SC + 4*g; sh = E_SH + 4*g
            for p in (0, 2): c.append(f'v_pk_mul_f32 v[{G+p}:{G+p+1}], v[{G+p}:{G+p+1}], v[{E_C}:{E_C+1}]')
            for p in (0, 2): c.append(f'v_pk_mul_f32 v[{B+p}:{B+p+1}], v[{B+p}:{B+p+1}], v[{E_C}:{E_C+1}]')
            for p in (0, 2): c.append(f'v_pk_mul_f32 v[{sc+p}:{sc+p+1}], v[{G+p}:{G+p+1}], v[{V+p}:{V+p+1}]')
            for p in (0, 2): c.append(f'v_pk_fma_f32 v[{sh+p}:{sh+p+1}], v[{M+p}:{M+p+1}], v[{sc+p}:{sc+p+1}], v[{B+p}:{B+p+1}] neg_lo:[1,0,0] neg_hi:[1,0,0]')
        return c
    def touch(self, chunk):
        return [f's_mul_i32 s53, s55, {chunk}', 's_add_u32 s53, s53, s54',
                f'buffer_load_dword v{V_TD}, v{V_TO}, s[56:59], s53 offen {self.opt.taux}']
    def tsched(self):
        o = self.opt; d = {}
        if not o.touch: return d
        for e in o.ts.split(','):
            p, c = e.split(':'); d.setdefault(p, []).append(int(c))
        return d
    def consumer_setup(self):
        A = self.A; o = self.opt
        self.lab('L_consumer')
        A('s_sub_u32 s23, s23, 4')
        A('s_lshr_b32 s28, s23, 1')
        A('v_and_b32 v1, 15, v0')
        A('v_lshrrev_b32 v2, 4, v0')
        A('v_lshrrev_b32 v3, 1, v1')
        A('v_xor_b32 v3, v3, v2')
        A('v_lshlrev_b32 v3, 4, v3')
        A('v_lshl_add_u32 v3, v1, 7, v3')
        A('s_lshl_b32 s29, s28, 11')
        A(f'v_add_u32 v{V_XA[0]}, s29, v3')
        A(f'v_xor_b32 v{V_XA[1]}, 64, v{V_XA[0]}')
        A(f'v_add_u32 v{V_XB[0]}, 0x10000, v{V_XA[0]}')
        A(f'v_add_u32 v{V_XB[1]}, 0x10000, v{V_XA[1]}')
        A('v_lshrrev_b32 v3, 2, v1')
        A('v_lshl_add_u32 v3, v2, 2, v3')
        A('v_mul_u32_u24 v3, 160, v3')
        A('v_and_b32 v4, 3, v1')
        A('v_lshl_add_u32 v3, v4, 3, v3')
        A(f'v_add_u32 v{V_W}, {WBASE}, v3')
        A('s_lshl_b32 s29, s28, 4')
        A('v_add_u32 v3, s29, v1')
        A(f'v_mul_u32_u24 v3, {ORS}, v3')
        A(f'v_lshl_add_u32 v{V_OUT}, v2, 3, v3')
        A('v_lshlrev_b32 v5, 3, v2')
        A('v_add_u32 v5, s27, v5')
        A('s_waitcnt lgkmcnt(0)')
        A('s_and_b32 s29, s23, 1'); A('s_cmp_eq_u32 s29, 1'); A('s_cbranch_scc1 L_cons_hi')

    def consumer(self, hi):
        A = self.A; o = self.opt
        tag = 'hi' if hi else 'lo'
        self.lab(f'L_cons_{tag}')
        nc = self.ncols(hi)
        for pi, sp in enumerate([8, 10, 12, 14]):
            for g in range(3):
                d = V_RAW + pi*6 + g*2
                A(f'global_load_dwordx2 v[{d}:{d+1}], v5, s[{sp}:{sp+1}] offset:{nc[g]*32}')
        ts = self.tsched() if o.tby == 'c' else {}
        for ch in ts.get('P', []):
            for ins in self.touch(ch): A(ins)
        if o.tsync: A('s_barrier')
        self.sp('T')
        for ch in ts.get('T', []):
            for ins in self.touch(ch): A(ins)
        A('s_mov_b32 s30, 0x3727c5ac')
        A('s_mov_b32 s31, 0xbfb8aa3b')
        if o.prio: A(f's_setprio {o.prio}')
        self.tri = 0; TR = lambda: self.tr(168)
        self.stamp(0); TR()
        A('s_barrier')
        self.stamp(1); TR(); self.sp('Bm1')
        for ch in ts.get('M', []):
            for ins in self.touch(ch): A(ins)
        for r in self.reads(0, hi): A(r)
        if o.fillrnd:
            for r in self.reads(1, hi): A(r)
        A('s_waitcnt lgkmcnt(0)')
        A('s_barrier')
        self.stamp(2); TR(); self.sp('B0')
        ml = self.mfma_list(hi)
        if o.chain6:
            ml2 = []
            blks = sorted(set(e[0] for e in ml))
            for b in blks:
                for st in (0, 1):
                    for e in ml:
                        if e[0] == b: ml2.append((st, e))
            for t2 in range(NSTEP // 2):
                for half in range(2):
                    for (st, (blk, (k, g), s_in)) in ml2[half*55:(half+1)*55]:
                        a = ACC + 4*blk; w = SETW[st] + (k*3 + g)*4; x = SETX[st] + 4*s_in
                        A(f'v_mfma_f32_16x16x32_bf16 v[{a}:{a+3}], v[{w}:{w+3}], v[{x}:{x+3}], v[{a}:{a+3}]')
                    t = 2*t2 + half
                    if t + 1 < NSTEP:
                        A('s_waitcnt lgkmcnt(0)'); A('s_barrier'); TR()
            for ins in ['s_waitcnt vmcnt(0)'] + self.params_code(): A(ins)
        for t in range(NSTEP if not o.chain6 else 0):
            st = t & 1
            fill = []
            if t + 1 < NSTEP and not o.nords: fill = self.reads(t + 1, hi)
            span = o.rdspan
            extra = []
            for ch in ts.get(str(t), []): extra += self.touch(ch)
            if t == NSTEP - 1:
                fill = ['s_waitcnt vmcnt(0)'] + self.params_code(); span = 54
            seen = set(); ri = 0
            for mi, (blk, (k, g), s_in) in enumerate(ml):
                a = ACC + 4*blk
                w = SETW[st] + (k*3 + g)*4; x = SETX[st] + 4*s_in
                c = f'v[{a}:{a+3}]'
                if t == 0 and blk not in seen: c = '0'
                seen.add(blk)
                A(f'v_mfma_f32_16x16x32_bf16 v[{a}:{a+3}], v[{w}:{w+3}], v[{x}:{x+3}], {c}')
                due = (mi + 1) * len(fill) // span if fill else 0
                while ri < min(due, len(fill)):
                    A(fill[ri]); ri += 1
                if mi == o.tpos:
                    for ins in extra: A(ins)
            assert ri == len(fill)
            if t + 1 < NSTEP:
                A('s_waitcnt lgkmcnt(0)')
                A('s_barrier')
                TR(); self.sp(f'B{t+1}')
                if t in (3, 9): self.stamp(3 if t == 3 else 4)
                if o.dbg == 1 and t == 9: A('s_memtime s[84:85]')
        self.stamp(5); TR(); self.sp('lend')
        if o.dbg == 1: A('s_memtime s[86:87]')
        A('s_nop 7')
        for ph in range(4):
            blks = []
            for s in (ph, ph + 4):
                for g in range(3):
                    if g == 2 and ((s >= 4) != hi): continue
                    blk = (g*8 + s) if g < 2 else 16 + (s - 4 if hi else s)
                    blks.append((blk, g, s))
            assert len(blks) == 5
            for bi, (blk, g, s) in enumerate(blks):
                a = ACC + 4*blk; U = E_U + 4*bi; sc = E_SC + 4*g; sh = E_SH + 4*g
                for p in (0, 2): A(f'v_pk_fma_f32 v[{U+p}:{U+p+1}], v[{a+p}:{a+p+1}], v[{sc+p}:{sc+p+1}], v[{sh+p}:{sh+p+1}]')
            for i in range(20): A(f'v_exp_f32 v{E_E+i}, v{E_U+i}')
            for i in range(0, 20, 2): A(f'v_pk_fma_f32 v[{E_E+i}:{E_E+i+1}], v[{E_E+i}:{E_E+i+1}], v[{E_C}:{E_C+1}], v[{E_C}:{E_C+1}]')
            for i in range(20): A(f'v_rcp_f32 v{E_E+i}, v{E_E+i}')
            for i in range(0, 20, 2): A(f'v_pk_mul_f32 v[{E_U+i}:{E_U+i+1}], v[{E_U+i}:{E_U+i+1}], v[{E_E+i}:{E_E+i+1}]')
            for bi, (blk, g, s) in enumerate(blks):
                U = E_U + 4*bi; E = E_E + 4*bi
                A(f'v_cvt_pk_bf16_f32 v{E}, v{U}, v{U+1}')
                A(f'v_cvt_pk_bf16_f32 v{E+1}, v{U+2}, v{U+3}')
                A(f'ds_write_b64 v{V_OUT}, v[{E}:{E+1}] offset:{s*32*ORS + nc[g]*32}')
            A('s_waitcnt lgkmcnt(0)')
            if ph == 3: self.stamp(6)
            A('s_barrier')
            TR()
        self.tr_end(168, 0)
        self.sp('E3')
        if o.spinpt:
            A('s_cmp_eq_u32 s2, 0'); A('s_cbranch_scc0 L_done')
            A('s_cmp_eq_u32 s23, 0'); A('s_cbranch_scc0 L_done')
            A('s_waitcnt lgkmcnt(0)')
            A('s_sub_u32 s44, s92, s60'); A(f's_mul_i32 s44, s44, {o.spinm}')
            self.lab(f'L_spin_{tag}')
            A('s_memrealtime s[66:67]'); A('s_waitcnt lgkmcnt(0)')
            A('s_sub_u32 s45, s66, s60'); A('s_cmp_lt_u32 s45, s44'); A(f's_cbranch_scc1 L_spin_{tag}')
        self.finish(tag)

    def build(self):
        o = self.opt; R = self.raw
        R(HEADER.rstrip('\n'))
        R(f'; @launch grid=(256,1,1) block=(512,1,1) lds={LDS_BYTES}')
        R('.amdgcn_target "amdgcn-amd-amdhsa--gfx950"'); R('.text'); R(f'.globl {NAME}'); R('.p2align 8'); R(f'.type {NAME},@function')
        self.lab(NAME)
        self.prologue()
        self.producer()
        R('.p2align 6')
        self.consumer_setup()
        self.consumer(False)
        R('.p2align 6')
        self.consumer(True)
        self.lab('L_done')
        self.A('s_endpgm')
        R('.section .rodata,"a"'); R('.p2align 6'); R(f'.amdhsa_kernel {NAME}')
        R('  .amdhsa_next_free_vgpr 256'); R('  .amdhsa_next_free_sgpr 96'); R('  .amdhsa_accum_offset 256')
        R('  .amdhsa_group_segment_fixed_size 0'); R('  .amdhsa_kernarg_size 72'); R('  .amdhsa_user_sgpr_count 2')
        R('  .amdhsa_user_sgpr_kernarg_segment_ptr 1'); R('  .amdhsa_system_sgpr_workgroup_id_x 1'); R('.end_amdhsa_kernel')
        return '\n'.join(self.L) + '\n'

def parse(argv):
    p = argparse.ArgumentParser()
    p.add_argument('-o', default='standalone__batchnorm__sampling.s')
    for k, v in dict(dbg=0, rdspan=48, order=2, pro=1, nords=0, nodma=0, touch=1, rounds=1, tsync=1, dw=0, dx=0, w1=-1, tpos=2, chain6=0, fillrnd=0, wmode=0, prio=0, meta=0).items():
        p.add_argument('--' + k, type=int, default=v)
    p.add_argument('--ts', default='T:2,0:3,2:4,4:5,6:6,8:7,10:8,12:9')
    p.add_argument('--spinpt', default=''); p.add_argument('--spinm', type=int, default=20)
    p.add_argument('--ov', default='')
    p.add_argument('--taux', default=''); p.add_argument('--tby', default='p')
    p.add_argument('--xaux', default=''); p.add_argument('--waux', default=''); p.add_argument('--saux', default='')
    return p.parse_args(argv)

from gen import META
if __name__ == '__main__':
    o = parse(sys.argv[1:])
    s = Gen(o).build()
    if o.meta: s += META.format(name=NAME)
    open(o.o, 'w').write(s)
```

```python
import sys, argparse, subprocess, re

NAME = 'standalone__batchnorm__sampling_kernel'
HEADER = open('standalone__batchnorm__sampling.s.ref').read().split('; Override launch')[0]

XSLOT = 32768; NXS = 3
WBASE = XSLOT*NXS; WSLOT = 16384; NWS = 4
LDS_BYTES = WBASE + WSLOT*NWS
ORS = 176
PB = 49152
NSTEP = 20
XBYTES = 1024*8*640*2; WBYTES = 3*640*640*2

SETX = [0, 68]; SETW = [32, 100]
V_RAW = 136
V_XA = [160, 161]; V_XB = [162, 163]; V_W = 164
V_OUT = 165; V_PA = 166; V_PW = 167
V_TRC = 168
ACC = 176
E_U = 0; E_E = 20; E_F = 40; E_SC = 52; E_SH = 136; E_C = 64

_size_cache = {}
def isizes(lines):
    todo = []
    def key(l):
        l = l.split(';')[0].strip()
        if not l or l.endswith(':') or l.startswith('.'): return None
        l = re.sub(r'\bL_[A-Za-z0-9_]+', '0', l)
        return l
    for l in lines:
        k = key(l)
        if k is not None and k not in _size_cache and k not in todo: todo.append(k)
    if todo:
        r = subprocess.run(['llvm-mc', '-triple=amdgcn-amd-amdhsa', '-mcpu=gfx950', '-show-encoding'], input='\n'.join(todo) + '\n', capture_output=True, text=True)
        enc = re.findall(r'encoding: \[([^\]]*)\]', r.stdout)
        assert len(enc) == len(todo), (len(enc), len(todo), r.stderr[:2000])
        for k, e in zip(todo, enc): _size_cache[k] = len(e.split(','))
    return [0 if key(l) is None else _size_cache[key(l)] for l in lines]

class Gen:
    def __init__(self, opt):
        self.L = []; self.opt = opt; self.tri = 0; self.uid = 0
    def A(self, s): self.L.append('  ' + s)
    def lab(self, s): self.L.append(s + ':')
    def raw(self, s): self.L.append(s)
    def tr(self, vreg):
        if self.opt.dbg != 2: return
        A = self.A; i = self.tri
        if i > 0:
            A('s_waitcnt lgkmcnt(0)')
            A(f'v_writelane_b32 v{vreg}, s{88 + 2*((i-1)&1)}, {i-1}')
        A(f's_mem{"time" if self.opt.cyc else "realtime"} s[{88 + 2*(i&1)}:{89 + 2*(i&1)}]')
        self.tri += 1
    def tr_end(self, vreg, slot):
        if self.opt.dbg != 2: return
        A = self.A; i = self.tri
        A('s_waitcnt lgkmcnt(0)')
        A(f'v_writelane_b32 v{vreg}, s{88 + 2*((i-1)&1)}, {i-1}')
        A(f'v_writelane_b32 v{vreg}, s60, 63')
        A(f's_cmp_eq_u32 s23, 0'); A(f's_cbranch_scc0 L_trskip{self.uid}')
        A('v_mbcnt_lo_u32_b32 v2, -1, 0'); A('v_mbcnt_hi_u32_b32 v2, -1, v2')
        A(f's_lshl_b32 s44, s2, 9'); A(f's_add_u32 s44, s44, {262144 + slot*256}')
        A('v_lshl_add_u32 v2, v2, 2, s44')
        A(f'global_store_dword v2, v{vreg}, s[62:63]')
        self.lab(f'L_trskip{self.uid}'); self.uid += 1
    def sp(self, name):
        if self.opt.spinpt == name: self.A('s_memrealtime s[92:93]')

    def div10(self, vrow, vpiece, vsrc):
        A = self.A
        A(f'v_mul_u32_u24 v{vrow}, 6554, v{vsrc}')
        A(f'v_lshrrev_b32 v{vrow}, 16, v{vrow}')
        A(f'v_mul_u32_u24 v{vpiece}, 10, v{vrow}')
        A(f'v_sub_u32 v{vpiece}, v{vsrc}, v{vpiece}')

    def entry(self):
        A = self.A; o = self.opt
        A('s_cmp_ge_u32 s2, 256'); A('s_cbranch_scc1 L_exit')
        A('s_load_dwordx16 s[4:19], s[0:1], 0')
        if o.dbg or o.spinpt:
            A('s_memrealtime s[60:61]')
            A('s_load_dwordx2 s[62:63], s[0:1], 64')
        A('v_lshrrev_b32 v1, 6, v0')
        A('v_and_b32 v0, 63, v0')
        A('s_and_b32 s20, s2, 7')
        A('v_readfirstlane_b32 s23, v1')
        A('s_lshr_b32 s25, s2, 3')
        A('s_lshr_b32 s22, s25, 3')
        A('s_and_b32 s21, s25, 7')
        A('s_lshl_b32 s20, s20, 2')
        A('s_add_u32 s20, s20, s22')
        A('s_mul_i32 s26, s20, 327680')
        A('s_mul_i32 s27, s21, 160')
        A('s_cmp_lt_u32 s23, 4')
        A('s_cbranch_scc1 L_producer')
        A('s_sub_u32 s23, s23, 4')
        A('v_min_u32 v3, 19, v0'); A('s_mul_i32 s29, s23, 20'); A('v_add_u32 v3, s29, v3')
        A('v_lshlrev_b32 v3, 1, v3'); A('v_add_u32 v3, s27, v3')
        A('s_waitcnt lgkmcnt(0)')
        for i, sp in enumerate([8, 10, 12, 14]):
            A(f'global_load_ushort v{V_RAW+i}, v3, s[{sp}:{sp+1}]')
        A('s_bitcmp1_b32 s23, 0'); A('s_cbranch_scc1 L_cons_hi'); A('s_branch L_cons_lo')
        self.lab('L_producer')

    def touch_setup(self):
        A = self.A; o = self.opt
        A('s_and_b32 s29, s23, 1')
        A('s_and_b32 s28, s23, 2')
        A('s_cmp_eq_u32 s28, 0'); A('s_cbranch_scc0 L_touch_w')
        A('s_lshl_b32 s30, s29, 4')
        A('v_add_u32 v3, s30, v0'); A('v_mul_u32_u24 v3, 10240, v3')
        A('s_mul_i32 s30, s21, 1280'); A('v_add_u32 v3, s30, v3')
        A('v_cmp_gt_u32 vcc, 16, v0')
        A('s_mov_b32 s53, s26'); A('s_movk_i32 s55, 128'); A('s_mov_b32 s58, s34')
        A('s_waitcnt lgkmcnt(0)')
        A('s_mov_b32 s56, s4'); A('s_and_b32 s57, s5, 0xffff')
        A('s_branch L_touch_j')
        self.lab('L_touch_w')
        self.div10(3, 4, 0)
        A('s_mul_i32 s30, s25, 6'); A('s_mul_i32 s31, s29, 3'); A('s_add_u32 s30, s30, s31')
        A('v_add_u32 v3, s30, v3')
        A('v_lshrrev_b32 v6, 6, v3')
        A('v_and_b32 v3, 63, v3')
        A('v_mul_u32_u24 v3, 1280, v3')
        A('v_lshl_add_u32 v3, v4, 7, v3')
        A('s_mov_b32 s30, 819200'); A('v_mul_lo_u32 v6, v6, s30'); A('v_add_u32 v3, v3, v6')
        A('v_cmp_gt_u32 vcc, 30, v0')
        A('s_mov_b32 s53, 0'); A('s_mov_b32 s55, 81920'); A('s_mov_b32 s58, s38')
        A('s_waitcnt lgkmcnt(0)')
        A('s_mov_b32 s56, s6'); A('s_and_b32 s57, s7, 0xffff')
        self.lab('L_touch_j')
        A('s_mov_b32 s59, s35')
        A('v_mov_b32 v4, 0x40000000')
        A('v_cndmask_b32 v20, v4, v3, vcc')

    def producer(self):
        A = self.A; o = self.opt
        A('v_lshrrev_b32 v2, 3, v0')
        A('v_lshrrev_b32 v3, 4, v0')
        A('s_and_b32 s29, s23, 1'); A('s_lshl_b32 s29, s29, 2')
        A('v_add_u32 v3, s29, v3')
        A('v_and_b32 v4, 7, v0')
        A('v_xor_b32 v4, v4, v3')
        A('v_mul_u32_u24 v2, 10240, v2')
        A('v_lshl_add_u32 v10, v4, 4, v2')
        A('v_lshl_add_u32 v7, s23, 6, v0')
        for j in range(4):
            if j: A('v_add_u32 v7, 0x100, v7')
            self.div10(3, 4, 7)
            A('v_bfe_u32 v5, v3, 2, 2'); A('v_lshlrev_b32 v5, 3, v5')
            A('v_bfe_u32 v6, v3, 4, 1'); A('v_lshl_add_u32 v5, v6, 2, v5')
            A('v_and_b32 v6, 3, v3'); A('v_add_u32 v5, v5, v6')
            A('v_mul_u32_u24 v5, 1280, v5')
            A('v_lshl_add_u32 v5, v4, 4, v5')
            A('v_lshrrev_b32 v6, 5, v3')
            A('v_mul_u32_u24 v6, 819200, v6')
            A(f'v_add_u32 v{11+j}, v5, v6')
        A('s_mul_i32 s46, s23, 81920'); A('s_add_u32 s46, s46, s26')
        A('s_lshl_b32 s41, s23, 10')
        A(f's_add_u32 s42, s41, {WBASE}')
        A('s_mov_b32 s47, s27')
        A('s_mov_b32 s43, 0')
        A('s_movk_i32 s48, 0x4000'); A('s_mov_b32 s49, 40960'); A('s_mov_b32 s50, 0xffff'); A('s_mov_b32 s51, 98304')
        A('s_mov_b32 s34, %d' % XBYTES); A('s_mov_b32 s35, 0x20000')
        A('s_mov_b32 s38, %d' % WBYTES); A('s_mov_b32 s39, s35')
        if o.touch: self.touch_setup()
        else: A('s_waitcnt lgkmcnt(0)')
        A('s_mov_b32 s32, s4'); A('s_and_b32 s33, s5, 0xffff')
        A('s_mov_b32 s36, s6'); A('s_and_b32 s37, s7, 0xffff')
        issued = []
        TR = lambda: self.tr(30)
        self.tri = 0
        def dma(txt):
            if not o.nodma: A(txt)
        xseq = [0]; wseq = [0]
        def x_half(X, second):
            assert xseq[0] == 2*X + int(second), (xseq, X, second); xseq[0] += 1
            A('s_mov_b32 m0, s41')
            A('s_addk_i32 s41, 0x4000')
            for i in range(4):
                dma(f'buffer_load_dwordx4 v10, s[32:35], s46 offen {o.xaux} lds')
                issued.append(('x', X))
                if i < 3: A('s_addk_i32 m0, 0x1000')
                A('s_addk_i32 s46, %d' % (1280 if not (second and i == 3) else 1280 - 10240 + 128))
            if second:
                A('s_sub_u32 s44, s41, s51'); A('s_cselect_b32 s41, s41, s44')
        def w_step(t):
            assert wseq[0] == t, (wseq, t); wseq[0] += 1
            A('s_add_u32 m0, s42, s43')
            A('s_add_u32 s43, s43, s48')
            for j in range(4):
                dma(f'buffer_load_dwordx4 v{11+j}, s[36:39], s47 offen {o.waux} lds')
                issued.append(('w', t))
                if j < 3:
                    A('s_addk_i32 m0, 0x1000')
                    A('s_and_b32 s43, s43, s50' if j == 0 else 's_nop 0')
            A('s_add_u32 s47, s47, s49')
        tstate = [0]
        def touch(ch):
            if not o.touch: return
            for _ in range(ch - tstate[0]): A('s_add_u32 s53, s53, s55')
            tstate[0] = ch
            A(f'buffer_load_dword v21, v20, s[56:59], s53 offen')
            issued.append(('t', ch))
        def need(step):
            req = [i for i, tg in enumerate(issued) if tg == ('x', step >> 1) or tg == ('w', step)]
            return len(issued) - 1 - max(req)
        def sync(t):
            TR()
            n = need(t + 2) if t + 2 < NSTEP else None
            if n is not None: A(f's_waitcnt vmcnt({n})')
            TR()
            A('s_barrier')
            return n
        TR()
        def do(item):
            if item[0] == 'w': w_step(int(item[1:]))
            elif item[0] == 'x': x_half(int(item[1:-1]), item[-1] == 'b')
            elif item[0] == 't': touch(int(item[1:]))
        early = {}
        for part in o.early.split(';'):
            k, v = part.split(':'); early[int(k)] = [e for e in v.split(',') if e]
        for it in range(-2, 2*o.d0):
            for e in early.get(it, []): do(e)
            sync(it)
        if o.dbg == 2 or o.unroll_p:
            for D in range(o.d0, 7):
                w_step(2*D + 3); x_half(D + 2, 0); touch(D + 3); sync(2*D)
                w_step(2*D + 4); x_half(D + 2, 1); sync(2*D + 1)
        else:
            A(f's_movk_i32 s45, {7 - o.d0}')
            self.lab('L_ploop')
            mark = len(self.L); ns = []
            for D in range(o.d0, 7):
                if D == o.d0 + 1: body_end = len(self.L)
                w_step(2*D + 3); x_half(D + 2, 0); touch(D + 3); a = sync(2*D)
                w_step(2*D + 4); x_half(D + 2, 1); b = sync(2*D + 1)
                ns.append((a, b))
            if len(set(ns)) != 1:
                mn = (min(a for a, b in ns), min(b for a, b in ns))
                sys.stderr.write(f'loop vmcnt variants {ns} -> {mn}\n')
            body = self.L[mark:body_end]
            mn = (min(a for a, b in ns), min(b for a, b in ns))
            it = iter(mn)
            body = [f'  s_waitcnt vmcnt({next(it)})' if l.strip().startswith('s_waitcnt vmcnt') else l for l in body]
            self.L = self.L[:mark] + body
            A('s_sub_u32 s45, s45, 1'); A('s_cmp_lg_u32 s45, 0'); A('s_cbranch_scc1 L_ploop')
        w_step(17); x_half(9, 0); sync(14)
        w_step(18); x_half(9, 1); sync(15)
        w_step(19); sync(16)
        self.store_addr()
        sync(17); sync(18)
        for ph in range(4):
            A('s_barrier')
            for j in range(3): A(f'ds_read_b128 v[{40+12*(ph&1)+4*j}:{43+12*(ph&1)+4*j}], v{22+j} offset:{ph*32*ORS}')
            for j in range(3):
                A(f's_waitcnt lgkmcnt({2-j})')
                A(f'buffer_store_dwordx4 v[{40+12*(ph&1)+4*j}:{43+12*(ph&1)+4*j}], v{26+j}, s[32:35], s45 offen {o.saux if ph < o.sauxn else o.saux2}')
            if ph < 3: A('s_addk_i32 s45, 1280')
        if o.dbg == 2:
            A('s_waitcnt vmcnt(0)'); TR(); self.tr_end(30, 1)
        self.lab('L_exit')
        A('s_endpgm')

    def store_addr(self):
        A = self.A
        A('s_mov_b32 s32, s16'); A('s_and_b32 s33, s17, 0xffff')
        A('s_lshr_b32 s43, s23, 1')
        A('s_and_b32 s44, s23, 1')
        A('s_mul_i32 s45, s43, 5120'); A('s_add_u32 s45, s45, s26'); A('s_add_u32 s45, s45, s27')
        A(f's_mul_i32 s43, s43, {4*32*ORS}')
        A(f's_mul_i32 s46, s44, {16*ORS}'); A('s_add_u32 s43, s43, s46')
        A('s_mul_i32 s44, s44, 163840')
        for j in range(3):
            A(f'v_add_u32 v3, {64*j}, v0')
            if j == 2: A('v_min_u32 v3, 159, v3')
            self.div10(4, 5, 3)
            A(f'v_mul_u32_u24 v6, {ORS}, v4')
            A(f'v_lshl_add_u32 v6, v5, 4, v6')
            A(f'v_add_u32 v{22+j}, s43, v6')
            A(f'v_mul_u32_u24 v6, 10240, v4')
            A(f'v_lshl_add_u32 v6, v5, 4, v6')
            A(f'v_add_u32 v{26+j}, s44, v6')
        A('v_cmp_gt_u32 vcc, 32, v0')
        A('v_mov_b32 v7, 0x40000000')
        A('s_nop 0')
        A('v_cndmask_b32 v28, v7, v28, vcc')

    def mfma_list(self, hi):
        out = []
        for s_in in range(8):
            for k in range(3):
                s_out = s_in + 1 - k
                if not 0 <= s_out < 8: continue
                out.append((s_out, (k, 0), s_in))
                out.append((8 + s_out, (k, 1), s_in))
                if (not hi and s_out < 4): out.append((16 + s_out, (k, 2), s_in))
                if (hi and s_out >= 4): out.append((16 + s_out - 4, (k, 2), s_in))
        assert len(out) == 55
        out.sort(key=lambda e: (e[0], e[1][0]))
        return out
    def ncols(self, hi): return [3, 4, 2] if hi else [0, 1, 2]
    def reads(self, step, hi):
        st = step & 1
        xs = (step >> 1) % NXS; kk = step & 1; ws = step % NWS
        nc = self.ncols(hi)
        xr = []
        for s in range(8):
            va = (V_XA if xs < 2 else V_XB)[kk]
            off = (xs*XSLOT if xs < 2 else 0) + s*4096
            d = SETX[st] + 4*s
            xr.append(f'ds_read_b128 v[{d}:{d+3}], v{va} offset:{off}')
        wr = []
        for k in range(3):
            for g in range(3):
                for u in range(2):
                    d = SETW[st] + (k*3 + g)*4 + 2*u
                    off = ws*WSLOT + k*5120 + u*2560 + nc[g]*32
                    wr.append(f'ds_read_b64_tr_b16 v[{d}:{d+1}], v{V_W} offset:{off}')
        r = []
        while xr or wr:
            if wr: r.append(wr.pop(0))
            if wr: r.append(wr.pop(0))
            if xr: r.append(xr.pop(0))
        return r
    def params_code(self):
        M, V, G, B = V_RAW, V_RAW+1, V_RAW+2, V_RAW+3
        c = ['s_waitcnt vmcnt(0)']
        for r in (M, V, G, B): c.append(f'v_lshlrev_b32 v{r}, 16, v{r}')
        c += [f'v_add_f32 v{V}, 0x3727c5ac, v{V}', f'v_rsq_f32 v{V}, v{V}', f'v_mul_f32 v{G}, 0xbfb8aa3b, v{G}',
              f'v_mul_f32 v{B}, 0xbfb8aa3b, v{B}', f'v_mul_f32 v{V_RAW+4}, v{G}, v{V}', f'v_fma_f32 v{V_RAW+5}, -v{M}, v{V_RAW+4}, v{B}']
        return c

    def consumer(self, hi):
        A = self.A; o = self.opt
        tag = 'hi' if hi else 'lo'
        start = len(self.L)
        self.lab(f'L_cons_{tag}')
        nc = self.ncols(hi)
        A('s_lshr_b32 s28, s23, 1')
        if o.pads:
            A('s_cmp_eq_u32 s28, 0'); A(f's_cbranch_scc1 L_pad_{tag}_1')
            A('s_cmp_eq_u32 s28, 1'); A(f's_branch L_pad_{tag}_3')
            self.lab(f'L_warm_{tag}')
        A('v_and_b32 v1, 15, v0')
        A('v_lshrrev_b32 v2, 4, v0')
        A('v_lshrrev_b32 v3, 1, v1')
        A('v_xor_b32 v3, v3, v2')
        A('v_lshlrev_b32 v3, 4, v3')
        A('v_lshl_add_u32 v3, v1, 7, v3')
        A('s_lshl_b32 s29, s28, 11')
        A(f'v_add_u32 v{V_XA[0]}, s29, v3')
        A(f'v_xor_b32 v{V_XA[1]}, 64, v{V_XA[0]}')
        A(f'v_add_u32 v{V_XB[0]}, 0x10000, v{V_XA[0]}')
        A(f'v_add_u32 v{V_XB[1]}, 0x10000, v{V_XA[1]}')
        A('v_lshrrev_b32 v3, 2, v1')
        A('v_lshl_add_u32 v3, v2, 2, v3')
        A('v_mul_u32_u24 v3, 160, v3')
        A('v_and_b32 v4, 3, v1')
        A('v_lshl_add_u32 v3, v4, 3, v3')
        A(f'v_add_u32 v{V_W}, {WBASE}, v3')
        A('s_lshl_b32 s29, s28, 4')
        A('v_add_u32 v3, s29, v1')
        A(f'v_mul_u32_u24 v3, {ORS}, v3')
        A(f'v_lshl_add_u32 v{V_OUT}, v2, 3, v3')
        A(f'v_lshlrev_b32 v3, 4, v2'); A(f'v_add_u32 v{V_PA}, {PB}, v3')
        A('v_min_u32 v3, 19, v0'); A('s_mul_i32 s29, s23, 20'); A('v_add_u32 v3, s29, v3')
        A(f'v_lshlrev_b32 v4, 2, v3'); A(f'v_add_u32 v{V_PW}, {PB}, v4')
        if o.prio: A(f's_setprio {o.prio}')
        A('s_cmp_lg_u32 s2, s2')
        TR = lambda: self.tr(V_TRC)
        self.tri = 0
        TR()
        A('s_barrier')
        TR(); self.sp('Bm1')
        for r in self.reads(0, hi): A(r)
        A('s_waitcnt lgkmcnt(0)')
        if not o.b0late:
            A('s_barrier')
            TR(); self.sp('B0')
        ml = self.mfma_list(hi)
        for t in range(NSTEP):
            st = t & 1
            fill = self.reads(t + 1, hi) if t + 1 < NSTEP else []
            span = o.rdspan
            extra = {}
            if t == o.pstep:
                pc = self.params_code()
                for i, ins in enumerate(pc): extra.setdefault(1 + 4*i, []).append(ins)
            if t == 17:
                extra.setdefault(50, []).append(f'ds_write_b32 v{V_PW}, v{V_RAW+4}')
                extra.setdefault(51, []).append(f'ds_write_b32 v{V_PW}, v{V_RAW+5} offset:320')
            if t == NSTEP - 1:
                fill = []
                for g in range(3):
                    fill.append(f'ds_read_b128 v[{E_SC+4*g}:{E_SC+4*g+3}], v{V_PA} offset:{nc[g]*64}')
                    fill.append(f'ds_read_b128 v[{E_SH+4*g}:{E_SH+4*g+3}], v{V_PA} offset:{320 + nc[g]*64}')
                fill += [f'v_mov_b32 v{E_C}, 0xbfb8aa3b', f'v_mov_b32 v{E_C+1}, 0xbfb8aa3b']
                span = 30
            seen = set(); ri = 0
            for mi, (blk, (k, g), s_in) in enumerate(ml):
                a = ACC + 4*blk
                w = SETW[st] + (k*3 + g)*4; x = SETX[st] + 4*s_in
                c = f'v[{a}:{a+3}]'
                if t == 0 and blk not in seen: c = '0'
                seen.add(blk)
                A(f'v_mfma_f32_16x16x32_bf16 v[{a}:{a+3}], v[{w}:{w+3}], v[{x}:{x+3}], {c}')
                if t == 0 and o.b0late:
                    if mi == o.b0late - 1:
                        A('s_barrier'); TR(); self.sp('B0')
                    due = max(0, mi + 1 - o.b0late) * len(fill) // (50 - o.b0late)
                else:
                    due = (mi + 1) * len(fill) // span if fill else 0
                while ri < min(due, len(fill)):
                    A(fill[ri]); ri += 1
                for ins in extra.get(mi, []): A(ins)
            assert ri == len(fill)
            if t + 1 < NSTEP:
                A('s_waitcnt lgkmcnt(0)')
                A('s_barrier')
                TR(); self.sp(f'B{t+1}')
        TR(); self.sp('lend')
        A('s_waitcnt lgkmcnt(0)')
        A('s_nop 6')
        for ph in range(4):
            blks = []
            for s in (ph, ph + 4):
                for g in range(3):
                    if g == 2 and ((s >= 4) != hi): continue
                    blk = (g*8 + s) if g < 2 else 16 + (s - 4 if hi else s)
                    blks.append((blk, g, s))
            assert len(blks) == 5
            for bi, (blk, g, s) in enumerate(blks):
                a = ACC + 4*blk; U = E_U + 4*bi; sc = E_SC + 4*g; sh = E_SH + 4*g
                for p in (0, 2): A(f'v_pk_fma_f32 v[{U+p}:{U+p+1}], v[{a+p}:{a+p+1}], v[{sc+p}:{sc+p+1}], v[{sh+p}:{sh+p+1}]')
            for i in range(20): A(f'v_exp_f32 v{E_E+i}, v{E_U+i}')
            if ph > 0:
                A('s_waitcnt lgkmcnt(0)'); A('s_barrier'); TR()
            for i in range(0, 20, 2): A(f'v_pk_fma_f32 v[{E_E+i}:{E_E+i+1}], v[{E_E+i}:{E_E+i+1}], v[{E_C}:{E_C+1}], v[{E_C}:{E_C+1}]')
            for i in range(20): A(f'v_rcp_f32 v{E_E+i}, v{E_E+i}')
            for i in range(0, 20, 2): A(f'v_pk_mul_f32 v[{E_U+i}:{E_U+i+1}], v[{E_U+i}:{E_U+i+1}], v[{E_E+i}:{E_E+i+1}]')
            for bi, (blk, g, s) in enumerate(blks):
                U = E_U + 4*bi; F = E_F + 2*bi
                A(f'v_cvt_pk_bf16_f32 v{F}, v{U}, v{U+1}')
                A(f'v_cvt_pk_bf16_f32 v{F+1}, v{U+2}, v{U+3}')
                A(f'ds_write_b64 v{V_OUT}, v[{F}:{F+1}] offset:{s*32*ORS + nc[g]*32}')
        A('s_waitcnt lgkmcnt(0)'); A('s_barrier'); TR()
        self.tr_end(V_TRC, 0)
        self.sp('E3')
        if o.spinpt:
            A('s_cmp_eq_u32 s2, 0'); A(f's_cbranch_scc0 L_end_{tag}')
            A('s_cmp_eq_u32 s23, 0'); A(f's_cbranch_scc0 L_end_{tag}')
            A('s_waitcnt lgkmcnt(0)')
            A('s_sub_u32 s44, s92, s60'); A(f's_mul_i32 s44, s44, {o.spinm}')
            self.lab(f'L_spin_{tag}')
            A('s_memrealtime s[66:67]'); A('s_waitcnt lgkmcnt(0)')
            A('s_sub_u32 s45, s66, s60'); A('s_cmp_lt_u32 s45, s44'); A(f's_cbranch_scc1 L_spin_{tag}')
        self.lab(f'L_end_{tag}')
        A('s_endpgm')
        body = self.L[start:]
        sizes = isizes(body)
        out = []; off = 0; page = 1
        total = sum(sizes)
        npages = (total + 4*8 + 4095) // 4096
        for l, sz in zip(body, sizes):
            if o.pads and off >= page*4096 and sz and page <= 3:
                nxt = f'L_pad_{tag}_2' if page == 1 else f'L_warm_{tag}'
                out.append(f'L_pad_{tag}_{page}:'); out.append(f'  s_cbranch_scc1 {nxt}')
                off += 4; page += 1
            out.append(l); off += sz
        if o.pads:
            assert page == 4, f'expected 4 pages, got {page} (size {off})'
            assert off <= 4*4096 + (4096 if o.dbg or o.spinpt else 0), off
        self.L = self.L[:start] + out
        self.sizes[tag] = off

    def build(self):
        o = self.opt; R = self.raw
        self.sizes = {}
        R(HEADER.rstrip('\n'))
        R(f'; @launch grid=(256,1,1) block=(512,1,1) lds={LDS_BYTES}')
        R('.amdgcn_target "amdgcn-amd-amdhsa--gfx950"'); R('.text'); R(f'.globl {NAME}'); R('.p2align 8'); R(f'.type {NAME},@function')
        self.lab(NAME)
        s0 = len(self.L)
        self.entry()
        self.producer()
        self.sizes['prod'] = sum(isizes(self.L[s0:]))
        R('.p2align 12')
        self.consumer(False)
        R('.p2align 12')
        self.consumer(True)
        R('.section .rodata,"a"'); R('.p2align 6'); R(f'.amdhsa_kernel {NAME}')
        R('  .amdhsa_next_free_vgpr 256'); R('  .amdhsa_next_free_sgpr 96'); R('  .amdhsa_accum_offset 256')
        R('  .amdhsa_group_segment_fixed_size 0'); R('  .amdhsa_kernarg_size 72'); R('  .amdhsa_user_sgpr_count 2')
        R('  .amdhsa_user_sgpr_kernarg_segment_ptr 1'); R('  .amdhsa_system_sgpr_workgroup_id_x 1'); R('.end_amdhsa_kernel')
        sys.stderr.write(f'sizes: {self.sizes}\n')
        return '\n'.join(self.L) + '\n'

def parse(argv):
    p = argparse.ArgumentParser()
    p.add_argument('-o', default='standalone__batchnorm__sampling.s')
    for k, v in dict(dbg=0, rdspan=48, nodma=0, touch=1, t0=3, prio=0, meta=0, pads=1, pstep=8, unroll_p=0, spinm=20, cyc=0, b0late=20).items():
        p.add_argument('--' + k, type=int, default=v)
    p.add_argument('--spinpt', default='')
    p.add_argument('--early', default='-2:t0,w0,x0a,x0b,t1;-1:w1,x1a,t2;0:x1b,w2,w3;1:x2a,w4,t3;2:x2b,w5,x3a,t4;3:w6,x3b')
    p.add_argument('--d0', type=int, default=2)
    p.add_argument('--xaux', default=''); p.add_argument('--waux', default=''); p.add_argument('--saux', default=''); p.add_argument('--saux2', default=''); p.add_argument('--sauxn', type=int, default=4)
    return p.parse_args(argv)

from gen import META
if __name__ == '__main__':
    o = parse(sys.argv[1:])
    s = Gen(o).build()
    if o.meta: s += META.format(name=NAME)
    open(o.o, 'w').write(s)
```

```python
import sys, argparse, subprocess, re

NAME = 'standalone__batchnorm__sampling_kernel'
HEADER = open('standalone__batchnorm__sampling.s.ref').read().split('; Override launch')[0]

XSLOT = 32768; NXS = 3
WBASE = XSLOT*NXS; WSLOT = 16384; NWS = 4
LDS_BYTES = WBASE + WSLOT*NWS
ORS = 176
PB = 49152
NSTEP = 20
XBYTES = 1024*8*640*2; WBYTES = 3*640*640*2

SETX = [0, 68]; SETW = [32, 100]
V_RAW = 136
V_XA = [160, 161]; V_XB = [162, 163]; V_W = 164
V_OUT = 165; V_PA = 166; V_PW = 167
V_TRC = 168
ACC = 176
E_U = 0; E_E = 20; E_F = 40; E_SC = 52; E_SH = 136; E_C = 64

_size_cache = {}
def isizes(lines):
    todo = []
    def key(l):
        l = l.split(';')[0].strip()
        if not l or l.endswith(':') or l.startswith('.'): return None
        l = re.sub(r'\bL_[A-Za-z0-9_]+', '0', l)
        return l
    for l in lines:
        k = key(l)
        if k is not None and k not in _size_cache and k not in todo: todo.append(k)
    if todo:
        r = subprocess.run(['llvm-mc', '-triple=amdgcn-amd-amdhsa', '-mcpu=gfx950', '-show-encoding'], input='\n'.join(todo) + '\n', capture_output=True, text=True)
        enc = re.findall(r'encoding: \[([^\]]*)\]', r.stdout)
        assert len(enc) == len(todo), (len(enc), len(todo), r.stderr[:2000])
        for k, e in zip(todo, enc): _size_cache[k] = len(e.split(','))
    return [0 if key(l) is None else _size_cache[key(l)] for l in lines]

class Gen:
    def __init__(self, opt):
        self.L = []; self.opt = opt; self.tri = 0; self.uid = 0
    def A(self, s): self.L.append('  ' + s)
    def lab(self, s): self.L.append(s + ':')
    def raw(self, s): self.L.append(s)
    def tr(self, vreg):
        if self.opt.dbg != 2: return
        A = self.A; i = self.tri
        if i > 0:
            A('s_waitcnt lgkmcnt(0)')
            A(f'v_writelane_b32 v{vreg}, s{88 + 2*((i-1)&1)}, {i-1}')
        A(f's_mem{"time" if self.opt.cyc else "realtime"} s[{88 + 2*(i&1)}:{89 + 2*(i&1)}]')
        self.tri += 1
    def tr_end(self, vreg, slot):
        if self.opt.dbg != 2: return
        A = self.A; i = self.tri
        A('s_waitcnt lgkmcnt(0)')
        A(f'v_writelane_b32 v{vreg}, s{88 + 2*((i-1)&1)}, {i-1}')
        A(f'v_writelane_b32 v{vreg}, s60, 63')
        A(f's_cmp_eq_u32 s23, 0'); A(f's_cbranch_scc0 L_trskip{self.uid}')
        A('v_mbcnt_lo_u32_b32 v2, -1, 0'); A('v_mbcnt_hi_u32_b32 v2, -1, v2')
        A(f's_lshl_b32 s44, s2, 9'); A(f's_add_u32 s44, s44, {262144 + slot*256}')
        A('v_lshl_add_u32 v2, v2, 2, s44')
        A(f'global_store_dword v2, v{vreg}, s[62:63]')
        self.lab(f'L_trskip{self.uid}'); self.uid += 1
    def sp(self, name):
        if self.opt.spinpt == name: self.A('s_memrealtime s[92:93]')

    def div10(self, vrow, vpiece, vsrc):
        A = self.A
        A(f'v_mul_u32_u24 v{vrow}, 6554, v{vsrc}')
        A(f'v_lshrrev_b32 v{vrow}, 16, v{vrow}')
        A(f'v_mul_u32_u24 v{vpiece}, 10, v{vrow}')
        A(f'v_sub_u32 v{vpiece}, v{vsrc}, v{vpiece}')

    def entry(self):
        A = self.A; o = self.opt
        A('s_cmp_ge_u32 s2, 256'); A('s_cbranch_scc1 L_exit')
        A('s_load_dwordx16 s[4:19], s[0:1], 0')
        if o.dbg or o.spinpt:
            A('s_memrealtime s[60:61]')
            A('s_load_dwordx2 s[62:63], s[0:1], 64')
        A('v_lshrrev_b32 v1, 6, v0')
        A('v_and_b32 v0, 63, v0')
        A('s_and_b32 s20, s2, 7')
        A('v_readfirstlane_b32 s23, v1')
        A('s_lshr_b32 s25, s2, 3')
        A('s_lshr_b32 s22, s25, 3')
        A('s_and_b32 s21, s25, 7')
        A('s_lshl_b32 s20, s20, 2')
        A('s_add_u32 s20, s20, s22')
        A('s_mul_i32 s26, s20, 327680')
        A('s_mul_i32 s27, s21, 160')
        A('s_cmp_lt_u32 s23, 4')
        A('s_cbranch_scc1 L_producer')
        A('s_sub_u32 s23, s23, 4')
        A('v_min_u32 v3, 19, v0'); A('s_mul_i32 s29, s23, 20'); A('v_add_u32 v3, s29, v3')
        A('v_lshlrev_b32 v3, 1, v3'); A('v_add_u32 v3, s27, v3')
        A('s_waitcnt lgkmcnt(0)')
        for i, sp in enumerate([8, 10, 12, 14]):
            A(f'global_load_ushort v{V_RAW+i}, v3, s[{sp}:{sp+1}]')
        A('s_bitcmp1_b32 s23, 0'); A('s_cbranch_scc1 L_cons_hi'); A('s_branch L_cons_lo')
        self.lab('L_producer')

    def touch_setup(self):
        A = self.A; o = self.opt
        A('s_and_b32 s29, s23, 1')
        A('s_and_b32 s28, s23, 2')
        A('s_cmp_eq_u32 s28, 0'); A('s_cbranch_scc0 L_touch_w')
        A('s_lshl_b32 s30, s29, 4')
        A('v_add_u32 v3, s30, v0'); A('v_mul_u32_u24 v3, 10240, v3')
        A('s_mul_i32 s30, s21, 1280'); A('v_add_u32 v3, s30, v3')
        A('v_cmp_gt_u32 vcc, 16, v0')
        A('s_mov_b32 s53, s26'); A('s_movk_i32 s55, 128'); A('s_mov_b32 s58, s34')
        if o.mrot:
            A('s_add_u32 s67, s53, 1280'); A('s_add_u32 s53, s53, s69')
        A('s_waitcnt lgkmcnt(0)')
        A('s_mov_b32 s56, s4'); A('s_and_b32 s57, s5, 0xffff')
        A('s_branch L_touch_j')
        self.lab('L_touch_w')
        self.div10(3, 4, 0)
        if o.wmode == 0:
            A('s_mul_i32 s30, s25, 6'); A('s_mul_i32 s31, s29, 3'); A('s_add_u32 s30, s30, s31')
            A('v_add_u32 v3, s30, v3')
            A('v_lshrrev_b32 v6, 6, v3')
            A('v_and_b32 v3, 63, v3')
            A('v_mul_u32_u24 v3, 1280, v3')
            A('v_lshl_add_u32 v3, v4, 7, v3')
            A('s_mov_b32 s30, 819200'); A('v_mul_lo_u32 v6, v6, s30'); A('v_add_u32 v3, v3, v6')
            A('v_cmp_gt_u32 vcc, 30, v0')
            A('s_mov_b32 s53, 0'); A('s_mov_b32 s55, 81920'); A('s_mov_b32 s58, s38')
        else:
            A('s_lshl_b32 s30, s2, 3'); A('s_lshl_b32 s31, s29, 2'); A('s_add_u32 s30, s30, s31')
            A('v_add_u32 v3, s30, v3')
            A('v_mul_u32_u24 v3, 1280, v3')
            A('v_lshl_add_u32 v3, v4, 7, v3')
            A('v_cmp_gt_u32 vcc, 40, v0')
            A('s_mov_b32 s53, 0'); A('s_mov_b32 s55, 0x4000000'); A('s_mov_b32 s58, s38')
            if o.mrot: A('s_mov_b32 s67, -1')
        A('s_waitcnt lgkmcnt(0)')
        A('s_mov_b32 s56, s6'); A('s_and_b32 s57, s7, 0xffff')
        self.lab('L_touch_j')
        A('s_mov_b32 s59, s35')
        A('v_mov_b32 v4, 0x40000000')
        A('v_cndmask_b32 v20, v4, v3, vcc')

    def producer(self):
        A = self.A; o = self.opt
        A('v_lshrrev_b32 v2, 3, v0')
        A('v_lshrrev_b32 v3, 4, v0')
        A('s_and_b32 s29, s23, 1'); A('s_lshl_b32 s29, s29, 2')
        A('v_add_u32 v3, s29, v3')
        A('v_and_b32 v4, 7, v0')
        A('v_xor_b32 v4, v4, v3')
        A('v_mul_u32_u24 v2, 10240, v2')
        A('v_lshl_add_u32 v10, v4, 4, v2')
        A('v_lshl_add_u32 v7, s23, 6, v0')
        for j in range(4):
            if j: A('v_add_u32 v7, 0x100, v7')
            self.div10(3, 4, 7)
            A('v_bfe_u32 v5, v3, 2, 2'); A('v_lshlrev_b32 v5, 3, v5')
            A('v_bfe_u32 v6, v3, 4, 1'); A('v_lshl_add_u32 v5, v6, 2, v5')
            A('v_and_b32 v6, 3, v3'); A('v_add_u32 v5, v5, v6')
            A('v_mul_u32_u24 v5, 1280, v5')
            A('v_lshl_add_u32 v5, v4, 4, v5')
            A('v_lshrrev_b32 v6, 5, v3')
            A('v_mul_u32_u24 v6, 819200, v6')
            A(f'v_add_u32 v{11+j}, v5, v6')
        A('s_mul_i32 s46, s23, 81920'); A('s_add_u32 s46, s46, s26')
        A('s_lshl_b32 s41, s23, 10')
        A(f's_add_u32 s42, s41, {WBASE}')
        A('s_mov_b32 s47, s27')
        if o.mrot:
            A('s_lshl_b32 s68, s22, 1'); A(f's_min_u32 s68, s68, 5')
            A('s_add_u32 s64, s46, 1280'); A('s_mov_b32 s65, s46')
            A('s_add_u32 s66, s47, 819200')
            A('s_lshl_b32 s69, s68, 7'); A('s_add_u32 s46, s46, s69')
            A('s_mul_i32 s31, s68, 81920'); A('s_add_u32 s47, s47, s31')
        A('s_mov_b32 s43, 0')
        A('s_movk_i32 s48, 0x4000'); A('s_mov_b32 s49, 40960'); A('s_mov_b32 s50, 0xffff'); A('s_mov_b32 s51, 98304')
        A('s_mov_b32 s34, %d' % XBYTES); A('s_mov_b32 s35, 0x20000')
        A('s_mov_b32 s38, %d' % WBYTES); A('s_mov_b32 s39, s35')
        if o.touch: self.touch_setup()
        else: A('s_waitcnt lgkmcnt(0)')
        A('s_mov_b32 s32, s4'); A('s_and_b32 s33, s5, 0xffff')
        A('s_mov_b32 s36, s6'); A('s_and_b32 s37, s7, 0xffff')
        issued = []
        TR = lambda: self.tr(30)
        self.tri = 0
        def dma(txt):
            if not o.nodma: A(txt)
        xseq = [0]; wseq = [0]
        def x_half(X, second, wrap=False):
            assert xseq[0] == 2*X + int(second), (xseq, X, second); xseq[0] += 1
            if wrap and o.mrot and not second:
                A('s_cmp_eq_u32 s46, s64'); A('s_cselect_b32 s46, s65, s46')
            A('s_mov_b32 m0, s41')
            A('s_addk_i32 s41, 0x4000')
            for i in range(4):
                dma(f'buffer_load_dwordx4 v10, s[32:35], s46 offen {o.xaux} lds')
                issued.append(('x', X))
                if i < 3: A('s_addk_i32 m0, 0x1000')
                A('s_addk_i32 s46, %d' % (1280 if not (second and i == 3) else 1280 - 10240 + 128))
            if second:
                A('s_sub_u32 s44, s41, s51'); A('s_cselect_b32 s41, s41, s44')
        def w_step(t, wrap=False):
            assert wseq[0] == t, (wseq, t); wseq[0] += 1
            if wrap and o.mrot:
                A('s_cmp_eq_u32 s47, s66'); A('s_cselect_b32 s47, s27, s47')
            A('s_add_u32 m0, s42, s43')
            A('s_add_u32 s43, s43, s48')
            for j in range(4):
                dma(f'buffer_load_dwordx4 v{11+j}, s[36:39], s47 offen {o.waux} lds')
                issued.append(('w', t))
                if j < 3:
                    A('s_addk_i32 m0, 0x1000')
                    A('s_and_b32 s43, s43, s50' if j == 0 else 's_nop 0')
            A('s_add_u32 s47, s47, s49')
        tstate = [0]
        def touch(ch, wrap=False):
            if not o.touch: return
            if ch > 9 and (o.dbg == 2 or o.unroll_p): return
            for _ in range(ch - tstate[0]): A('s_add_u32 s53, s53, s55')
            if wrap and o.mrot:
                A('s_cmp_eq_u32 s53, s67'); A('s_cselect_b32 s53, s26, s53')
            tstate[0] = ch
            A(f'buffer_load_dword v21, v20, s[56:59], s53 offen')
            issued.append(('t', ch))
        def need(step):
            req = [i for i, tg in enumerate(issued) if tg == ('x', step >> 1) or tg == ('w', step)]
            return len(issued) - 1 - max(req)
        def dummyh(frac):
            n = 20 // frac
            for i in range(0, n, 2): A(f'v_pk_fma_f32 v[{70+i}:{71+i}], v[{100+i}:{101+i}], v[{120}:{121}], v[{122}:{123}]')
            for i in range(n): A(f'v_exp_f32 v{130+i}, v{70+i}')
            for i in range(0, n, 2): A(f'v_pk_fma_f32 v[{130+i}:{131+i}], v[{130+i}:{131+i}], v[{120}:{121}], v[{120}:{121}]')
            for i in range(n): A(f'v_rcp_f32 v{130+i}, v{130+i}')
            for i in range(0, n, 2): A(f'v_pk_mul_f32 v[{70+i}:{71+i}], v[{70+i}:{71+i}], v[{130+i}:{131+i}]')
            for i in range(0, n, 2): A(f'v_cvt_pk_bf16_f32 v{150+i//2}, v{70+i}, v{71+i}')
        def sync(t):
            if o.pspread and t >= 19 - o.pspread * o.pskip: dummyh(o.pspread)
            TR()
            n = need(t + 2) if t + 2 < NSTEP else None
            if n is not None: A(f's_waitcnt vmcnt({n})')
            TR()
            A('s_barrier')
            return n
        TR()
        def do(item):
            if item[0] == 'w': w_step(int(item[1:]))
            elif item[0] == 'x': x_half(int(item[1:-1]), item[-1] == 'b')
            elif item[0] == 't': touch(int(item[1:]))
        early = {}
        for part in o.early.split(';'):
            k, v = part.split(':'); early[int(k)] = [e for e in v.split(',') if e]
        for it in range(-2, 2*o.d0):
            for e in early.get(it, []): do(e)
            if it == -2: self.store_addr()
            sync(it)
        if o.dbg == 2 or o.unroll_p:
            for D in range(o.d0, 7):
                w_step(2*D + 3 + o.wa, True); x_half(D + 2, 0, True); touch(D + o.tl, True); sync(2*D)
                w_step(2*D + 4 + o.wa, True); x_half(D + 2, 1, True); sync(2*D + 1)
        else:
            A(f's_movk_i32 s45, {7 - o.d0}')
            self.lab('L_ploop')
            mark = len(self.L); ns = []
            for D in range(o.d0, 7):
                if D == o.d0 + 1: body_end = len(self.L)
                w_step(2*D + 3 + o.wa, True); x_half(D + 2, 0, True); touch(D + o.tl, True); a = sync(2*D)
                w_step(2*D + 4 + o.wa, True); x_half(D + 2, 1, True); b = sync(2*D + 1)
                ns.append((a, b))
            if len(set(ns)) != 1:
                mn = (min(a for a, b in ns), min(b for a, b in ns))
                sys.stderr.write(f'loop vmcnt variants {ns} -> {mn}\n')
            body = self.L[mark:body_end]
            mn = (min(a for a, b in ns), min(b for a, b in ns))
            it = iter(mn)
            body = [f'  s_waitcnt vmcnt({next(it)})' if l.strip().startswith('s_waitcnt vmcnt') else l for l in body]
            self.L = self.L[:mark] + body
            A('s_sub_u32 s45, s45, 1'); A('s_cmp_lg_u32 s45, 0'); A('s_cbranch_scc1 L_ploop')
        w_step(17 + o.wa); x_half(9, 0); sync(14)
        w_step(18 + o.wa); x_half(9, 1); sync(15)
        if not o.wa: w_step(19)
        def dummy(nph):
            for _ in range(nph):
                for i in range(0, 20, 2): A(f'v_pk_fma_f32 v[{70+i}:{71+i}], v[{100+i}:{101+i}], v[{120}:{121}], v[{122}:{123}]')
                for i in range(20): A(f'v_exp_f32 v{130+i}, v{70+i}')
                for i in range(0, 20, 2): A(f'v_pk_fma_f32 v[{130+i}:{131+i}], v[{130+i}:{131+i}], v[{120}:{121}], v[{120}:{121}]')
                for i in range(20): A(f'v_rcp_f32 v{130+i}, v{130+i}')
                for i in range(0, 20, 2): A(f'v_pk_mul_f32 v[{70+i}:{71+i}], v[{70+i}:{71+i}], v[{130+i}:{131+i}]')
                for i in range(0, 20, 2): A(f'v_cvt_pk_bf16_f32 v{150+i//2}, v{70+i}, v{71+i}')
        if o.pvalu >= 1: dummy(1)
        sync(16)
        if o.pvalu >= 2: dummy(1)
        sync(17)
        if o.pvalu >= 3: dummy(1)
        sync(18)
        for ph in range(4):
            A('s_barrier')
            for j in range(3): A(f'ds_read_b128 v[{40+12*(ph&1)+4*j}:{43+12*(ph&1)+4*j}], v{22+j} offset:{ph*32*ORS}')
            for j in range(3):
                A(f's_waitcnt lgkmcnt({2-j})')
                A(f'buffer_store_dwordx4 v[{40+12*(ph&1)+4*j}:{43+12*(ph&1)+4*j}], v{26+j}, s[72:75], s76 offen {o.saux if ph < o.sauxn else o.saux2}')
            if ph < 3: A('s_addk_i32 s76, 1280')
        if o.dbg == 2:
            A('s_waitcnt vmcnt(0)'); TR(); self.tr_end(30, 1)
        self.lab('L_exit')
        A('s_endpgm')

    def store_addr(self):
        A = self.A
        A('s_mov_b32 s72, s16'); A('s_and_b32 s73, s17, 0xffff'); A('s_mov_b32 s74, s34'); A('s_mov_b32 s75, s35')
        A('s_lshr_b32 s77, s23, 1')
        A('s_and_b32 s78, s23, 1')
        A('s_mul_i32 s76, s77, 5120'); A('s_add_u32 s76, s76, s26'); A('s_add_u32 s76, s76, s27')
        A(f's_mul_i32 s77, s77, {4*32*ORS}')
        A(f's_mul_i32 s79, s78, {16*ORS}'); A('s_add_u32 s77, s77, s79')
        A('s_mul_i32 s78, s78, 163840')
        for j in range(3):
            A(f'v_add_u32 v3, {64*j}, v0')
            if j == 2: A('v_min_u32 v3, 159, v3')
            self.div10(4, 5, 3)
            A(f'v_mul_u32_u24 v6, {ORS}, v4')
            A(f'v_lshl_add_u32 v6, v5, 4, v6')
            A(f'v_add_u32 v{22+j}, s77, v6')
            A(f'v_mul_u32_u24 v6, 10240, v4')
            A(f'v_lshl_add_u32 v6, v5, 4, v6')
            A(f'v_add_u32 v{26+j}, s78, v6')
        A('v_cmp_gt_u32 vcc, 32, v0')
        A('v_mov_b32 v7, 0x40000000')
        A('s_nop 0')
        A('v_cndmask_b32 v28, v7, v28, vcc')

    def mfma_list(self, hi):
        out = []
        for s_in in range(8):
            for k in range(3):
                s_out = s_in + 1 - k
                if not 0 <= s_out < 8: continue
                out.append((s_out, (k, 0), s_in))
                out.append((8 + s_out, (k, 1), s_in))
                if (not hi and s_out < 4): out.append((16 + s_out, (k, 2), s_in))
                if (hi and s_out >= 4): out.append((16 + s_out - 4, (k, 2), s_in))
        assert len(out) == 55
        od = self.opt.order
        sval = lambda b: (b % 8) if b < 16 else (b - 16 + (4 if hi else 0))
        if od == 2: out.sort(key=lambda e: (e[0], e[1][0]))
        elif od == 3: out.sort(key=lambda e: (sval(e[0]), e[1][1], e[1][0]))
        elif od == 5: out.sort(key=lambda e: (e[0], -e[1][0]) if e[0] % 2 else (e[0], e[1][0]))
        elif od == 6: out.sort(key=lambda e: (e[1][1], sval(e[0]), e[1][0] if sval(e[0]) % 2 == 0 else -e[1][0]))
        return out
    def ncols(self, hi): return [3, 4, 2] if hi else [0, 1, 2]
    def reads(self, step, hi):
        st = step & 1
        xs = (step >> 1) % NXS; kk = step & 1; ws = step % NWS
        nc = self.ncols(hi)
        xr = []
        for s in range(8):
            va = (V_XA if xs < 2 else V_XB)[kk]
            off = (xs*XSLOT if xs < 2 else 0) + s*4096
            d = SETX[st] + 4*s
            xr.append(f'ds_read_b128 v[{d}:{d+3}], v{va} offset:{off}')
        wr = []
        for k in range(3):
            for g in range(3):
                for u in range(2):
                    d = SETW[st] + (k*3 + g)*4 + 2*u
                    off = ws*WSLOT + k*5120 + u*2560 + nc[g]*32
                    wr.append(f'ds_read_b64_tr_b16 v[{d}:{d+1}], v{V_W} offset:{off}')
        r = []
        while xr or wr:
            if wr: r.append(wr.pop(0))
            if wr: r.append(wr.pop(0))
            if xr: r.append(xr.pop(0))
        return r
    def params_code(self):
        M, V, G, B = V_RAW, V_RAW+1, V_RAW+2, V_RAW+3
        c = ['s_waitcnt vmcnt(0)']
        for r in (M, V, G, B): c.append(f'v_lshlrev_b32 v{r}, 16, v{r}')
        c += [f'v_add_f32 v{V}, 0x3727c5ac, v{V}', f'v_rsq_f32 v{V}, v{V}', f'v_mul_f32 v{G}, 0xbfb8aa3b, v{G}',
              f'v_mul_f32 v{B}, 0xbfb8aa3b, v{B}', f'v_mul_f32 v{V_RAW+4}, v{G}, v{V}', f'v_fma_f32 v{V_RAW+5}, -v{M}, v{V_RAW+4}, v{B}']
        return c

    def consumer(self, hi):
        A = self.A; o = self.opt
        tag = 'hi' if hi else 'lo'
        start = len(self.L)
        self.lab(f'L_cons_{tag}')
        nc = self.ncols(hi)
        A('s_lshr_b32 s28, s23, 1')
        if o.pads:
            A('s_cmp_eq_u32 s28, 0'); A(f's_cbranch_scc1 L_pad_{tag}_1')
            A('s_cmp_eq_u32 s28, 1'); A(f's_branch L_pad_{tag}_3')
            self.lab(f'L_warm_{tag}')
        A('v_and_b32 v1, 15, v0')
        A('v_lshrrev_b32 v2, 4, v0')
        A('v_lshrrev_b32 v3, 1, v1')
        A('v_xor_b32 v3, v3, v2')
        A('v_lshlrev_b32 v3, 4, v3')
        A('v_lshl_add_u32 v3, v1, 7, v3')
        A('s_lshl_b32 s29, s28, 11')
        A(f'v_add_u32 v{V_XA[0]}, s29, v3')
        A(f'v_xor_b32 v{V_XA[1]}, 64, v{V_XA[0]}')
        A(f'v_add_u32 v{V_XB[0]}, 0x10000, v{V_XA[0]}')
        A(f'v_add_u32 v{V_XB[1]}, 0x10000, v{V_XA[1]}')
        A('v_lshrrev_b32 v3, 2, v1')
        A('v_lshl_add_u32 v3, v2, 2, v3')
        A('v_mul_u32_u24 v3, 160, v3')
        A('v_and_b32 v4, 3, v1')
        A('v_lshl_add_u32 v3, v4, 3, v3')
        A(f'v_add_u32 v{V_W}, {WBASE}, v3')
        A('s_lshl_b32 s29, s28, 4')
        A('v_add_u32 v3, s29, v1')
        A(f'v_mul_u32_u24 v3, {ORS}, v3')
        A(f'v_lshl_add_u32 v{V_OUT}, v2, 3, v3')
        A(f'v_lshlrev_b32 v3, 4, v2'); A(f'v_add_u32 v{V_PA}, {PB}, v3')
        A('v_min_u32 v3, 19, v0'); A('s_mul_i32 s29, s23, 20'); A('v_add_u32 v3, s29, v3')
        A(f'v_lshlrev_b32 v4, 2, v3'); A(f'v_add_u32 v{V_PW}, {PB}, v4')
        if o.prio: A(f's_setprio {o.prio}')
        A('s_cmp_lg_u32 s2, s2')
        TR = lambda: self.tr(V_TRC)
        self.tri = 0
        TR()
        A('s_barrier')
        TR(); self.sp('Bm1')
        for r in self.reads(0, hi): A(r)
        A('s_waitcnt lgkmcnt(0)')
        if not o.b0late:
            A('s_barrier')
            TR(); self.sp('B0')
        ml = self.mfma_list(hi)
        for t in range(NSTEP):
            st = t & 1
            fill = self.reads(t + 1, hi) if t + 1 < NSTEP else []
            span = o.rdspan
            extra = {}
            if t == o.pstep:
                pc = self.params_code()
                for i, ins in enumerate(pc): extra.setdefault(1 + 4*i, []).append(ins)
            if t == 17:
                extra.setdefault(50, []).append(f'ds_write_b32 v{V_PW}, v{V_RAW+4}')
                extra.setdefault(51, []).append(f'ds_write_b32 v{V_PW}, v{V_RAW+5} offset:320')
            if t == NSTEP - 1:
                fill = []
                for g in range(3):
                    fill.append(f'ds_read_b128 v[{E_SC+4*g}:{E_SC+4*g+3}], v{V_PA} offset:{nc[g]*64}')
                    fill.append(f'ds_read_b128 v[{E_SH+4*g}:{E_SH+4*g+3}], v{V_PA} offset:{320 + nc[g]*64}')
                fill += [f'v_mov_b32 v{E_C}, 0xbfb8aa3b', f'v_mov_b32 v{E_C+1}, 0xbfb8aa3b']
                span = 30
            seen = set(); ri = 0
            for mi, (blk, (k, g), s_in) in enumerate(ml):
                a = ACC + 4*blk
                w = SETW[st] + (k*3 + g)*4; x = SETX[st] + 4*s_in
                c = f'v[{a}:{a+3}]'
                if t == 0 and blk not in seen: c = '0'
                seen.add(blk)
                if o.swapab: A(f'v_mfma_f32_16x16x32_bf16 v[{a}:{a+3}], v[{x}:{x+3}], v[{w}:{w+3}], {c}')
                else: A(f'v_mfma_f32_16x16x32_bf16 v[{a}:{a+3}], v[{w}:{w+3}], v[{x}:{x+3}], {c}')
                if t == 0 and o.b0late:
                    if mi == o.b0late - 1:
                        A('s_barrier'); TR(); self.sp('B0')
                    due = max(0, mi + 1 - o.b0late) * len(fill) // (50 - o.b0late)
                else:
                    due = (mi + 1) * len(fill) // span if fill else 0
                while ri < min(due, len(fill)):
                    A(fill[ri]); ri += 1
                for ins in extra.get(mi, []): A(ins)
            assert ri == len(fill)
            if t + 1 < NSTEP:
                A('s_waitcnt lgkmcnt(0)')
                A('s_barrier')
                TR(); self.sp(f'B{t+1}')
        TR(); self.sp('lend')
        A('s_waitcnt lgkmcnt(0)')
        A('s_nop 6')
        for ph in range(4):
            if ph < max(o.pvalu, o.pskip):
                if ph > 0: A('s_barrier'); TR()
                continue
            blks = []
            for s in (ph, ph + 4):
                for g in range(3):
                    if g == 2 and ((s >= 4) != hi): continue
                    blk = (g*8 + s) if g < 2 else 16 + (s - 4 if hi else s)
                    blks.append((blk, g, s))
            assert len(blks) == 5
            for bi, (blk, g, s) in enumerate(blks):
                a = ACC + 4*blk; U = E_U + 4*bi; sc = E_SC + 4*g; sh = E_SH + 4*g
                for p in (0, 2): A(f'v_pk_fma_f32 v[{U+p}:{U+p+1}], v[{a+p}:{a+p+1}], v[{sc+p}:{sc+p+1}], v[{sh+p}:{sh+p+1}]')
            for i in range(20): A(f'v_exp_f32 v{E_E+i}, v{E_U+i}')
            if ph > 0:
                A('s_waitcnt lgkmcnt(0)'); A('s_barrier'); TR()
            for i in range(0, 20, 2): A(f'v_pk_fma_f32 v[{E_E+i}:{E_E+i+1}], v[{E_E+i}:{E_E+i+1}], v[{E_C}:{E_C+1}], v[{E_C}:{E_C+1}]')
            for i in range(20): A(f'v_rcp_f32 v{E_E+i}, v{E_E+i}')
            for i in range(0, 20, 2): A(f'v_pk_mul_f32 v[{E_U+i}:{E_U+i+1}], v[{E_U+i}:{E_U+i+1}], v[{E_E+i}:{E_E+i+1}]')
            for bi, (blk, g, s) in enumerate(blks):
                U = E_U + 4*bi; F = E_F + 2*bi
                A(f'v_cvt_pk_bf16_f32 v{F}, v{U}, v{U+1}')
                A(f'v_cvt_pk_bf16_f32 v{F+1}, v{U+2}, v{U+3}')
                A(f'ds_write_b64 v{V_OUT}, v[{F}:{F+1}] offset:{s*32*ORS + nc[g]*32}')
        A('s_waitcnt lgkmcnt(0)'); A('s_barrier'); TR()
        self.tr_end(V_TRC, 0)
        self.sp('E3')
        if o.spinpt:
            A('s_cmp_eq_u32 s2, 0'); A(f's_cbranch_scc0 L_end_{tag}')
            A('s_cmp_eq_u32 s23, 0'); A(f's_cbranch_scc0 L_end_{tag}')
            A('s_waitcnt lgkmcnt(0)')
            A('s_sub_u32 s44, s92, s60'); A(f's_mul_i32 s44, s44, {o.spinm}')
            self.lab(f'L_spin_{tag}')
            A('s_memrealtime s[66:67]'); A('s_waitcnt lgkmcnt(0)')
            A('s_sub_u32 s45, s66, s60'); A('s_cmp_lt_u32 s45, s44'); A(f's_cbranch_scc1 L_spin_{tag}')
        self.lab(f'L_end_{tag}')
        A('s_endpgm')
        body = self.L[start:]
        sizes = isizes(body)
        out = []; off = 0; page = 1
        total = sum(sizes)
        npages = (total + 4*8 + 4095) // 4096
        for l, sz in zip(body, sizes):
            if o.pads and off >= page*4096 and sz and page <= 3:
                nxt = f'L_pad_{tag}_2' if page == 1 else f'L_warm_{tag}'
                out.append(f'L_pad_{tag}_{page}:'); out.append(f'  s_cbranch_scc1 {nxt}')
                off += 4; page += 1
            out.append(l); off += sz
        if o.pads:
            assert page == 4, f'expected 4 pages, got {page} (size {off})'
            assert off <= 4*4096 + (4096 if o.dbg or o.spinpt else 0), off
        self.L = self.L[:start] + out
        self.sizes[tag] = off

    def build(self):
        o = self.opt; R = self.raw
        self.sizes = {}
        R(HEADER.rstrip('\n'))
        R(f'; @launch grid=(256,1,1) block=(512,1,1) lds={LDS_BYTES}')
        R('.amdgcn_target "amdgcn-amd-amdhsa--gfx950"'); R('.text'); R(f'.globl {NAME}'); R('.p2align 8'); R(f'.type {NAME},@function')
        self.lab(NAME)
        s0 = len(self.L)
        self.entry()
        self.producer()
        self.sizes['prod'] = sum(isizes(self.L[s0:]))
        R('.p2align 12')
        self.consumer(False)
        R('.p2align 12')
        self.consumer(True)
        R('.section .rodata,"a"'); R('.p2align 6'); R(f'.amdhsa_kernel {NAME}')
        R('  .amdhsa_next_free_vgpr 256'); R('  .amdhsa_next_free_sgpr 96'); R('  .amdhsa_accum_offset 256')
        R('  .amdhsa_group_segment_fixed_size 0'); R('  .amdhsa_kernarg_size 72'); R('  .amdhsa_user_sgpr_count 2')
        R('  .amdhsa_user_sgpr_kernarg_segment_ptr 1'); R('  .amdhsa_system_sgpr_workgroup_id_x 1'); R('.end_amdhsa_kernel')
        sys.stderr.write(f'sizes: {self.sizes}\n')
        return '\n'.join(self.L) + '\n'

def parse(argv):
    p = argparse.ArgumentParser()
    p.add_argument('-o', default='standalone__batchnorm__sampling.s')
    for k, v in dict(dbg=0, rdspan=48, nodma=0, touch=1, t0=3, prio=0, meta=0, pads=1, pstep=8, unroll_p=0, spinm=20, cyc=0, b0late=20, wmode=1, tl=3, wa=0, swapab=0, order=5, pvalu=0, pspread=0, pskip=0, mrot=0).items():
        p.add_argument('--' + k, type=int, default=v)
    p.add_argument('--spinpt', default='')
    p.add_argument('--early', default='-2:t0,w0,x0a,x0b,t1,t2,w1;-1:x1a,x1b,w2,t3;0:w3,x2a;1:w4,x2b,t4;2:w5,x3a;3:w6,x3b')
    p.add_argument('--d0', type=int, default=2)
    p.add_argument('--xaux', default=''); p.add_argument('--waux', default=''); p.add_argument('--saux', default='nt'); p.add_argument('--saux2', default=''); p.add_argument('--sauxn', type=int, default=3)
    return p.parse_args(argv)

from gen import META
if __name__ == '__main__':
    o = parse(sys.argv[1:])
    s = Gen(o).build()
    if o.meta: s += META.format(name=NAME)
    open(o.o, 'w').write(s)
```

```python
import sys, argparse, subprocess, re

NAME = 'standalone__batchnorm__sampling_kernel'
HEADER = open('standalone__batchnorm__sampling.s.ref').read().split('; Override launch')[0]

XSLOT = 32768; NXS = 3
WBASE = XSLOT*NXS; WSLOT = 16384; NWS = 4
LDS_BYTES = WBASE + WSLOT*NWS
ORS = 176
import os
ORS = int(os.environ.get('ORS', ORS))
PB = 49152
NSTEP = 20
XBYTES = 1024*8*640*2; WBYTES = 3*640*640*2

SETX = [0, 68]; SETW = [32, 100]
V_RAW = 136
V_XA = [160, 161]; V_XB = [162, 163]; V_W = 164
V_OUT = 165; V_PA = 166; V_PW = 167
V_TRC = 168
ACC = 176
E_U = 0; E_E = 20; E_F = 40; E_SC = 52; E_SH = 136; E_C = 64

_size_cache = {}
def isizes(lines):
    todo = []
    def key(l):
        l = l.split(';')[0].strip()
        if not l or l.endswith(':') or l.startswith('.'): return None
        l = re.sub(r'\bL_[A-Za-z0-9_]+', '0', l)
        return l
    for l in lines:
        k = key(l)
        if k is not None and k not in _size_cache and k not in todo: todo.append(k)
    if todo:
        r = subprocess.run(['llvm-mc', '-triple=amdgcn-amd-amdhsa', '-mcpu=gfx950', '-show-encoding'], input='\n'.join(todo) + '\n', capture_output=True, text=True)
        enc = re.findall(r'encoding: \[([^\]]*)\]', r.stdout)
        assert len(enc) == len(todo), (len(enc), len(todo), r.stderr[:2000])
        for k, e in zip(todo, enc): _size_cache[k] = len(e.split(','))
    return [0 if key(l) is None else _size_cache[key(l)] for l in lines]

class Gen:
    def __init__(self, opt):
        self.L = []; self.opt = opt; self.tri = 0; self.uid = 0
    def A(self, s): self.L.append('  ' + s)
    def lab(self, s): self.L.append(s + ':')
    def raw(self, s): self.L.append(s)
    def tr(self, vreg):
        if self.opt.dbg != 2: return
        A = self.A; i = self.tri
        if i > 0:
            A('s_waitcnt lgkmcnt(0)')
            A(f'v_writelane_b32 v{vreg}, s{88 + 2*((i-1)&1)}, {i-1}')
        A(f's_mem{"time" if self.opt.cyc else "realtime"} s[{88 + 2*(i&1)}:{89 + 2*(i&1)}]')
        self.tri += 1
    def tr_end(self, vreg, slot):
        if self.opt.dbg != 2: return
        A = self.A; i = self.tri
        A('s_waitcnt lgkmcnt(0)')
        A(f'v_writelane_b32 v{vreg}, s{88 + 2*((i-1)&1)}, {i-1}')
        A(f'v_writelane_b32 v{vreg}, s60, 63')
        A(f's_cmp_eq_u32 s23, 0'); A(f's_cbranch_scc0 L_trskip{self.uid}')
        A('v_mbcnt_lo_u32_b32 v2, -1, 0'); A('v_mbcnt_hi_u32_b32 v2, -1, v2')
        A(f's_lshl_b32 s44, s2, 9'); A(f's_add_u32 s44, s44, {262144 + slot*256}')
        A('v_lshl_add_u32 v2, v2, 2, s44')
        A(f'global_store_dword v2, v{vreg}, s[62:63]')
        self.lab(f'L_trskip{self.uid}'); self.uid += 1
    def sp(self, name):
        if self.opt.spinpt == name: self.A('s_memrealtime s[92:93]')

    def div10(self, vrow, vpiece, vsrc):
        A = self.A
        A(f'v_mul_u32_u24 v{vrow}, 6554, v{vsrc}')
        A(f'v_lshrrev_b32 v{vrow}, 16, v{vrow}')
        A(f'v_mul_u32_u24 v{vpiece}, 10, v{vrow}')
        A(f'v_sub_u32 v{vpiece}, v{vsrc}, v{vpiece}')

    def entry(self):
        A = self.A; o = self.opt
        A('s_cmp_ge_u32 s2, 256'); A('s_cbranch_scc1 L_exit')
        A('s_load_dwordx16 s[4:19], s[0:1], 0')
        if o.dbg or o.spinpt:
            A('s_memrealtime s[60:61]')
            A('s_load_dwordx2 s[62:63], s[0:1], 64')
        A('v_lshrrev_b32 v1, 6, v0')
        A('v_and_b32 v0, 63, v0')
        A('s_and_b32 s20, s2, 7')
        A('v_readfirstlane_b32 s23, v1')
        A('s_lshr_b32 s25, s2, 3')
        A('s_lshr_b32 s22, s25, 3')
        A('s_and_b32 s21, s25, 7')
        A('s_lshl_b32 s20, s20, 2')
        A('s_add_u32 s20, s20, s22')
        A('s_mul_i32 s26, s20, 327680')
        A('s_mul_i32 s27, s21, 160')
        A('s_cmp_lt_u32 s23, 4')
        A('s_cbranch_scc1 L_producer')
        A('s_sub_u32 s23, s23, 4')
        A('v_min_u32 v3, 19, v0'); A('s_mul_i32 s29, s23, 20'); A('v_add_u32 v3, s29, v3')
        A('v_lshlrev_b32 v3, 1, v3'); A('v_add_u32 v3, s27, v3')
        A('s_waitcnt lgkmcnt(0)')
        for i, sp in enumerate([8, 10, 12, 14]):
            A(f'global_load_ushort v{V_RAW+i}, v3, s[{sp}:{sp+1}]')
        A('s_bitcmp1_b32 s23, 0'); A('s_cbranch_scc1 L_cons_hi'); A('s_branch L_cons_lo')
        self.lab('L_producer')

    def touch_setup(self):
        A = self.A; o = self.opt
        A('s_and_b32 s29, s23, 1')
        A('s_and_b32 s28, s23, 2')
        A('s_cmp_eq_u32 s28, 0'); A('s_cbranch_scc0 L_touch_w')
        A('s_lshl_b32 s30, s29, 4')
        if o.xmulti:
            A('v_and_b32 v5, 15, v0'); A('v_add_u32 v3, s30, v5'); A('v_mul_u32_u24 v3, 10240, v3')
            A('v_lshrrev_b32 v5, 4, v0'); A('v_lshl_add_u32 v3, v5, 7, v3')
            A('s_mul_i32 s30, s21, 1280'); A('v_add_u32 v3, s30, v3')
            A(f'v_cmp_gt_u32 vcc, {16*o.xmulti}, v0')
        else:
            A('v_add_u32 v3, s30, v0'); A('v_mul_u32_u24 v3, 10240, v3')
            A('s_mul_i32 s30, s21, 1280'); A('v_add_u32 v3, s30, v3')
            A('v_cmp_gt_u32 vcc, 16, v0')
        A('s_mov_b32 s53, s26'); A('s_movk_i32 s55, 128'); A('s_mov_b32 s58, s34')
        if o.mrot:
            A('s_add_u32 s67, s53, 1280'); A('s_add_u32 s53, s53, s69')
        A('s_waitcnt lgkmcnt(0)')
        A('s_mov_b32 s56, s4'); A('s_and_b32 s57, s5, 0xffff')
        A('s_branch L_touch_j')
        self.lab('L_touch_w')
        self.div10(3, 4, 0)
        if o.wmode == 0:
            A('s_mul_i32 s30, s25, 6'); A('s_mul_i32 s31, s29, 3'); A('s_add_u32 s30, s30, s31')
            A('v_add_u32 v3, s30, v3')
            A('v_lshrrev_b32 v6, 6, v3')
            A('v_and_b32 v3, 63, v3')
            A('v_mul_u32_u24 v3, 1280, v3')
            A('v_lshl_add_u32 v3, v4, 7, v3')
            A('s_mov_b32 s30, 819200'); A('v_mul_lo_u32 v6, v6, s30'); A('v_add_u32 v3, v3, v6')
            A('v_cmp_gt_u32 vcc, 30, v0')
            A('s_mov_b32 s53, 0'); A('s_mov_b32 s55, 81920'); A('s_mov_b32 s58, s38')
        else:
            A('s_lshl_b32 s30, s2, 3'); A('s_lshl_b32 s31, s29, 2'); A('s_add_u32 s30, s30, s31')
            A('v_add_u32 v3, s30, v3')
            A('v_mul_u32_u24 v3, 1280, v3')
            A('v_lshl_add_u32 v3, v4, 7, v3')
            A('v_cmp_gt_u32 vcc, 40, v0')
            first = min(int(e[1:]) for part in o.early.split(';') for e in part.split(':')[1].split(',') if e and e[0] == 't')
            A(f's_mov_b32 s53, {(-first*0x4000000) & 0xffffffff:#x}'); A('s_mov_b32 s55, 0x4000000'); A('s_mov_b32 s58, s38')
            if o.mrot: A('s_mov_b32 s67, -1')
        A('s_waitcnt lgkmcnt(0)')
        A('s_mov_b32 s56, s6'); A('s_and_b32 s57, s7, 0xffff')
        self.lab('L_touch_j')
        A('s_mov_b32 s59, s35')
        A('v_mov_b32 v4, 0x40000000')
        A('v_cndmask_b32 v20, v4, v3, vcc')

    def producer(self):
        A = self.A; o = self.opt
        A('v_lshrrev_b32 v2, 3, v0')
        A('v_lshrrev_b32 v3, 4, v0')
        A('s_and_b32 s29, s23, 1'); A('s_lshl_b32 s29, s29, 2')
        A('v_add_u32 v3, s29, v3')
        A('v_and_b32 v4, 7, v0')
        A('v_xor_b32 v4, v4, v3')
        A('v_mul_u32_u24 v2, 10240, v2')
        A('v_lshl_add_u32 v10, v4, 4, v2')
        A('s_mul_i32 s46, s23, 81920'); A('s_add_u32 s46, s46, s26')
        A('s_lshl_b32 s41, s23, 10')
        A('s_mov_b32 s51, 98304')
        A('s_mov_b32 s34, %d' % XBYTES); A('s_mov_b32 s35, 0x20000')
        done = set()
        def setup_w():
            if 'w' in done: return
            done.add('w')
            A('v_lshl_add_u32 v7, s23, 6, v0')
            for j in range(4):
                if j: A('v_add_u32 v7, 0x100, v7')
                self.div10(3, 4, 7)
                A('v_bfe_u32 v5, v3, 2, 2'); A('v_lshlrev_b32 v5, 3, v5')
                A('v_bfe_u32 v6, v3, 4, 1'); A('v_lshl_add_u32 v5, v6, 2, v5')
                A('v_and_b32 v6, 3, v3'); A('v_add_u32 v5, v5, v6')
                A('v_mul_u32_u24 v5, 1280, v5')
                A('v_lshl_add_u32 v5, v4, 4, v5')
                A('v_lshrrev_b32 v6, 5, v3')
                A('v_mul_u32_u24 v6, 819200, v6')
                A(f'v_add_u32 v{11+j}, v5, v6')
            A('s_lshl_b32 s42, s23, 10'); A(f's_add_u32 s42, s42, {WBASE}')
            A('s_mov_b32 s47, s27')
            A('s_mov_b32 s43, 0')
            A('s_movk_i32 s48, 0x4000'); A('s_mov_b32 s49, 40960'); A('s_mov_b32 s50, 0xffff')
            A('s_mov_b32 s39, s35')
        def setup_k():
            if 'k' in done: return
            done.add('k')
            A('s_waitcnt lgkmcnt(0)')
            A('s_mov_b32 s32, s4'); A('s_and_b32 s33, s5, 0xffff')
            A('s_mov_b32 s36, s6'); A('s_and_b32 s37, s7, 0xffff')
        def setup_t():
            if 't' in done or not o.touch: return
            done.add('t')
            self.touch_setup()
        A('s_mov_b32 s38, %d' % WBYTES)
        if not o.lazy:
            setup_w(); setup_t(); setup_k()
        if o.stouch:
            A('s_mul_i32 s82, s21, 1280'); A('s_add_u32 s82, s82, s46')
            A('s_add_u32 s80, s4, s82'); A('s_addc_u32 s81, s5, 0')
        sstate = [0]
        def stouch(ch):
            if ch > 9: return
            d = (ch - sstate[0]) * 128; sstate[0] = ch
            if d: A(f's_add_u32 s80, s80, {d}'); A('s_addc_u32 s81, s81, 0')
            for i in range(8):
                if o.stouch == 1: A(f's_load_dword s83, s[80:81], {i*10240}')
                elif o.stouch == 2: A(f's_load_dwordx2 s[84:85], s[80:81], {i*10240 + 60}')
                else:
                    A(f's_load_dword s83, s[80:81], {i*10240}'); A(f's_load_dword s83, s[80:81], {i*10240 + 64}')
        issued = []
        TR = (lambda: self.tr(30)) if not o.stouch else (lambda: None)
        self.tri = 0
        def dma(txt):
            if not o.nodma: A(txt)
        xseq = [0]; wseq = [0]
        def x_half(X, second, wrap=False):
            assert xseq[0] == 2*X + int(second), (xseq, X, second); xseq[0] += 1
            if wrap and o.mrot and not second:
                A('s_cmp_eq_u32 s46, s64'); A('s_cselect_b32 s46, s65, s46')
            A('s_mov_b32 m0, s41')
            A('s_addk_i32 s41, 0x4000')
            for i in range(4):
                dma(f'buffer_load_dwordx4 v10, s[32:35], s46 offen {o.xaux} lds')
                issued.append(('x', X))
                if i < 3: A('s_addk_i32 m0, 0x1000')
                A('s_addk_i32 s46, %d' % (1280 if not (second and i == 3) else 1280 - 10240 + 128))
            if second:
                A('s_sub_u32 s44, s41, s51'); A('s_cselect_b32 s41, s41, s44')
        def w_step(t, wrap=False):
            assert wseq[0] == t, (wseq, t); wseq[0] += 1
            if wrap and o.mrot:
                A('s_cmp_eq_u32 s47, s66'); A('s_cselect_b32 s47, s27, s47')
            A('s_add_u32 m0, s42, s43')
            A('s_add_u32 s43, s43, s48')
            for j in range(4):
                dma(f'buffer_load_dwordx4 v{11+j}, s[36:39], s47 offen {o.waux} lds')
                issued.append(('w', t))
                if j < 3:
                    A('s_addk_i32 m0, 0x1000')
                    A('s_and_b32 s43, s43, s50' if j == 0 else 's_nop 0')
            A('s_add_u32 s47, s47, s49')
        tstate = [0]
        def touch(ch, wrap=False):
            if not o.touch: return
            if ch > 9 and (o.dbg == 2 or o.unroll_p): return
            for _ in range(ch - tstate[0]): A('s_add_u32 s53, s53, s55')
            if wrap and o.mrot:
                A('s_cmp_eq_u32 s53, s67'); A('s_cselect_b32 s53, s26, s53')
            tstate[0] = ch
            A(f'buffer_load_dword v21, v20, s[56:59], s53 offen')
            issued.append(('t', ch))
        def need(step):
            req = [i for i, tg in enumerate(issued) if tg == ('x', step >> 1) or tg == ('w', step)]
            return len(issued) - 1 - max(req)
        def dummyh(frac):
            n = 20 // frac
            for i in range(0, n, 2): A(f'v_pk_fma_f32 v[{70+i}:{71+i}], v[{100+i}:{101+i}], v[{120}:{121}], v[{122}:{123}]')
            for i in range(n): A(f'v_exp_f32 v{130+i}, v{70+i}')
            for i in range(0, n, 2): A(f'v_pk_fma_f32 v[{130+i}:{131+i}], v[{130+i}:{131+i}], v[{120}:{121}], v[{120}:{121}]')
            for i in range(n): A(f'v_rcp_f32 v{130+i}, v{130+i}')
            for i in range(0, n, 2): A(f'v_pk_mul_f32 v[{70+i}:{71+i}], v[{70+i}:{71+i}], v[{130+i}:{131+i}]')
            for i in range(0, n, 2): A(f'v_cvt_pk_bf16_f32 v{150+i//2}, v{70+i}, v{71+i}')
        def sync(t):
            if o.pspread and t >= 19 - o.pspread * o.pskip: dummyh(o.pspread)
            TR()
            n = need(t + 2) if t + 2 < NSTEP else None
            if n is not None: A(f's_waitcnt vmcnt({n})')
            TR()
            A('s_barrier')
            return n
        TR()
        def do(item):
            if item[0] == 't': setup_t()
            if item[0] == 'w': setup_w()
            setup_k()
            if item[0] == 'w': w_step(int(item[1:]))
            elif item[0] == 'x': x_half(int(item[1:-1]), item[-1] == 'b')
            elif item[0] == 't': touch(int(item[1:]))
            elif item[0] == 's': stouch(int(item[1:]))
        early = {}
        for part in o.early.split(';'):
            k, v = part.split(':'); early[int(k)] = [e for e in v.split(',') if e]
        for it in range(-2, 2*o.d0):
            for e in early.get(it, []): do(e)
            if it == -2: self.store_addr()
            sync(it)
        if o.dbg == 2 or o.unroll_p:
            for D in range(o.d0, 7):
                w_step(2*D + 3 + o.wa, True); x_half(D + 2, 0, True)
                if not o.todd and o.tl: (stouch(D + o.tl) if o.stouch else touch(D + o.tl, True))
                for e in early.get(2*D, []): do(e)
                sync(2*D)
                w_step(2*D + 4 + o.wa, True); x_half(D + 2, 1, True)
                if o.todd: touch(D + o.tl, True)
                sync(2*D + 1)
        else:
            A(f's_movk_i32 s45, {7 - o.d0}')
            self.lab('L_ploop')
            mark = len(self.L); ns = []
            for D in range(o.d0, 7):
                if D == o.d0 + 1: body_end = len(self.L)
                w_step(2*D + 3 + o.wa, True); x_half(D + 2, 0, True)
                if not o.todd and o.tl: touch(D + o.tl, True)
                a = sync(2*D)
                w_step(2*D + 4 + o.wa, True); x_half(D + 2, 1, True)
                if o.todd: touch(D + o.tl, True)
                b = sync(2*D + 1)
                ns.append((a, b))
            if len(set(ns)) != 1:
                mn = (min(a for a, b in ns), min(b for a, b in ns))
                sys.stderr.write(f'loop vmcnt variants {ns} -> {mn}\n')
            body = self.L[mark:body_end]
            mn = (min(a for a, b in ns), min(b for a, b in ns))
            it = iter(mn)
            body = [f'  s_waitcnt vmcnt({next(it)})' if l.strip().startswith('s_waitcnt vmcnt') else l for l in body]
            self.L = self.L[:mark] + body
            A('s_sub_u32 s45, s45, 1'); A('s_cmp_lg_u32 s45, 0'); A('s_cbranch_scc1 L_ploop')
        w_step(17 + o.wa); x_half(9, 0); sync(14)
        w_step(18 + o.wa); x_half(9, 1); sync(15)
        if not o.wa: w_step(19)
        def dummy(nph):
            for _ in range(nph):
                for i in range(0, 20, 2): A(f'v_pk_fma_f32 v[{70+i}:{71+i}], v[{100+i}:{101+i}], v[{120}:{121}], v[{122}:{123}]')
                for i in range(20): A(f'v_exp_f32 v{130+i}, v{70+i}')
                for i in range(0, 20, 2): A(f'v_pk_fma_f32 v[{130+i}:{131+i}], v[{130+i}:{131+i}], v[{120}:{121}], v[{120}:{121}]')
                for i in range(20): A(f'v_rcp_f32 v{130+i}, v{130+i}')
                for i in range(0, 20, 2): A(f'v_pk_mul_f32 v[{70+i}:{71+i}], v[{70+i}:{71+i}], v[{130+i}:{131+i}]')
                for i in range(0, 20, 2): A(f'v_cvt_pk_bf16_f32 v{150+i//2}, v{70+i}, v{71+i}')
        if o.pvalu >= 1: dummy(1)
        sync(16)
        if o.pvalu >= 2: dummy(1)
        sync(17)
        if o.pvalu >= 3: dummy(1)
        sync(18)
        if o.stouch: A('s_waitcnt lgkmcnt(0)')
        for ph in range(4):
            A('s_barrier')
            for j in range(3): A(f'ds_read_b128 v[{40+12*(ph&1)+4*j}:{43+12*(ph&1)+4*j}], v{22+j} offset:{ph*32*ORS}')
            for j in range(3 if not o.nostore else 0):
                A(f's_waitcnt lgkmcnt({2-j})')
                A(f'buffer_store_dwordx4 v[{40+12*(ph&1)+4*j}:{43+12*(ph&1)+4*j}], v{26+j}, s[72:75], s76 offen {o.saux if ph < o.sauxn else o.saux2}')
            if ph < 3: A('s_addk_i32 s76, 1280')
        if o.dbg == 2 and not o.stouch:
            A('s_waitcnt vmcnt(0)'); TR(); self.tr_end(30, 1)
        self.lab('L_exit')
        A('s_endpgm')

    def store_addr(self):
        A = self.A
        A('s_mov_b32 s72, s16'); A('s_and_b32 s73, s17, 0xffff'); A('s_mov_b32 s74, s34'); A('s_mov_b32 s75, s35')
        A('s_lshr_b32 s77, s23, 1')
        A('s_and_b32 s78, s23, 1')
        A('s_mul_i32 s76, s77, 5120'); A('s_add_u32 s76, s76, s26'); A('s_add_u32 s76, s76, s27')
        A(f's_mul_i32 s77, s77, {4*32*ORS}')
        A(f's_mul_i32 s79, s78, {16*ORS}'); A('s_add_u32 s77, s77, s79')
        A('s_mul_i32 s78, s78, 163840')
        for j in range(3):
            A(f'v_add_u32 v3, {64*j}, v0')
            if j == 2: A('v_min_u32 v3, 159, v3')
            self.div10(4, 5, 3)
            A(f'v_mul_u32_u24 v6, {ORS}, v4')
            A(f'v_lshl_add_u32 v6, v5, 4, v6')
            A(f'v_add_u32 v{22+j}, s77, v6')
            A(f'v_mul_u32_u24 v6, 10240, v4')
            A(f'v_lshl_add_u32 v6, v5, 4, v6')
            A(f'v_add_u32 v{26+j}, s78, v6')
        A('v_cmp_gt_u32 vcc, 32, v0')
        A('v_mov_b32 v7, 0x40000000')
        A('s_nop 0')
        A('v_cndmask_b32 v28, v7, v28, vcc')

    def mfma_list(self, hi):
        out = []
        for s_in in range(8):
            for k in range(3):
                s_out = s_in + 1 - k
                if not 0 <= s_out < 8: continue
                out.append((s_out, (k, 0), s_in))
                out.append((8 + s_out, (k, 1), s_in))
                if (not hi and s_out < 4): out.append((16 + s_out, (k, 2), s_in))
                if (hi and s_out >= 4): out.append((16 + s_out - 4, (k, 2), s_in))
        assert len(out) == 55
        od = self.opt.order
        sval = lambda b: (b % 8) if b < 16 else (b - 16 + (4 if hi else 0))
        if od == 2: out.sort(key=lambda e: (e[0], e[1][0]))
        elif od == 3: out.sort(key=lambda e: (sval(e[0]), e[1][1], e[1][0]))
        elif od == 5: out.sort(key=lambda e: (e[0], -e[1][0]) if e[0] % 2 else (e[0], e[1][0]))
        elif od == 6: out.sort(key=lambda e: (e[1][1], sval(e[0]), e[1][0] if sval(e[0]) % 2 == 0 else -e[1][0]))
        return out
    def ncols(self, hi): return [3, 4, 2] if hi else [0, 1, 2]
    def reads(self, step, hi):
        st = step & 1
        xs = (step >> 1) % NXS; kk = step & 1; ws = step % NWS
        nc = self.ncols(hi)
        xr = []
        for s in range(8):
            va = (V_XA if xs < 2 else V_XB)[kk]
            off = (xs*XSLOT if xs < 2 else 0) + s*4096
            d = SETX[st] + 4*s
            xr.append(f'ds_read_b128 v[{d}:{d+3}], v{va} offset:{off}')
        wr = []
        for k in range(3):
            for g in range(3):
                for u in range(2):
                    d = SETW[st] + (k*3 + g)*4 + 2*u
                    off = ws*WSLOT + k*5120 + u*2560 + nc[g]*32
                    wr.append(f'ds_read_b64_tr_b16 v[{d}:{d+1}], v{V_W} offset:{off}')
        r = []
        while xr or wr:
            if wr: r.append(wr.pop(0))
            if wr: r.append(wr.pop(0))
            if xr: r.append(xr.pop(0))
        return r
    def params_code(self):
        M, V, G, B = V_RAW, V_RAW+1, V_RAW+2, V_RAW+3
        c = ['s_waitcnt vmcnt(0)']
        for r in (M, V, G, B): c.append(f'v_lshlrev_b32 v{r}, 16, v{r}')
        c += [f'v_add_f32 v{V}, 0x3727c5ac, v{V}', f'v_rsq_f32 v{V}, v{V}', f'v_mul_f32 v{G}, 0xbfb8aa3b, v{G}',
              f'v_mul_f32 v{B}, 0xbfb8aa3b, v{B}', f'v_mul_f32 v{V_RAW+4}, v{G}, v{V}', f'v_fma_f32 v{V_RAW+5}, -v{M}, v{V_RAW+4}, v{B}']
        return c

    def consumer(self, hi):
        A = self.A; o = self.opt
        tag = 'hi' if hi else 'lo'
        start = len(self.L)
        self.lab(f'L_cons_{tag}')
        nc = self.ncols(hi)
        A('s_lshr_b32 s28, s23, 1')
        if o.pads:
            A('s_cmp_eq_u32 s28, 0'); A(f's_cbranch_scc1 L_pad_{tag}_1')
            A('s_cmp_eq_u32 s28, 1'); A(f's_branch L_pad_{tag}_3')
            self.lab(f'L_warm_{tag}')
        A('v_and_b32 v1, 15, v0')
        A('v_lshrrev_b32 v2, 4, v0')
        A('v_lshrrev_b32 v3, 1, v1')
        A('v_xor_b32 v3, v3, v2')
        A('v_lshlrev_b32 v3, 4, v3')
        A('v_lshl_add_u32 v3, v1, 7, v3')
        A('s_lshl_b32 s29, s28, 11')
        A(f'v_add_u32 v{V_XA[0]}, s29, v3')
        A(f'v_xor_b32 v{V_XA[1]}, 64, v{V_XA[0]}')
        A(f'v_add_u32 v{V_XB[0]}, 0x10000, v{V_XA[0]}')
        A(f'v_add_u32 v{V_XB[1]}, 0x10000, v{V_XA[1]}')
        A('v_lshrrev_b32 v3, 2, v1')
        A('v_lshl_add_u32 v3, v2, 2, v3')
        A('v_mul_u32_u24 v3, 160, v3')
        A('v_and_b32 v4, 3, v1')
        A('v_lshl_add_u32 v3, v4, 3, v3')
        A(f'v_add_u32 v{V_W}, {WBASE}, v3')
        A('s_lshl_b32 s29, s28, 4')
        A('v_add_u32 v3, s29, v1')
        A(f'v_mul_u32_u24 v3, {ORS}, v3')
        A(f'v_lshl_add_u32 v{V_OUT}, v2, 3, v3')
        A(f'v_lshlrev_b32 v3, 4, v2'); A(f'v_add_u32 v{V_PA}, {PB}, v3')
        A('v_min_u32 v3, 19, v0'); A('s_mul_i32 s29, s23, 20'); A('v_add_u32 v3, s29, v3')
        A(f'v_lshlrev_b32 v4, 2, v3'); A(f'v_add_u32 v{V_PW}, {PB}, v4')
        if o.prio: A(f's_setprio {o.prio}')
        A('s_cmp_lg_u32 s2, s2')
        TR = lambda: self.tr(V_TRC)
        self.tri = 0
        TR()
        A('s_barrier')
        TR(); self.sp('Bm1')
        for r in self.reads(0, hi): A(r)
        A('s_waitcnt lgkmcnt(0)')
        if not o.b0late:
            A('s_barrier')
            TR(); self.sp('B0')
        ml = self.mfma_list(hi)
        for t in range(NSTEP):
            st = t & 1
            fill = self.reads(t + 1, hi) if t + 1 < NSTEP else []
            span = o.rdspan
            extra = {}
            if t == o.pstep:
                pc = self.params_code()
                for i, ins in enumerate(pc): extra.setdefault(1 + 4*i, []).append(ins)
            if t == 17:
                extra.setdefault(50, []).append(f'ds_write_b32 v{V_PW}, v{V_RAW+4}')
                extra.setdefault(51, []).append(f'ds_write_b32 v{V_PW}, v{V_RAW+5} offset:320')
            if t == NSTEP - 1:
                fill = []
                for g in range(3):
                    fill.append(f'ds_read_b128 v[{E_SC+4*g}:{E_SC+4*g+3}], v{V_PA} offset:{nc[g]*64}')
                    fill.append(f'ds_read_b128 v[{E_SH+4*g}:{E_SH+4*g+3}], v{V_PA} offset:{320 + nc[g]*64}')
                fill += [f'v_mov_b32 v{E_C}, 0xbfb8aa3b', f'v_mov_b32 v{E_C+1}, 0xbfb8aa3b']
                span = 30
            seen = set(); ri = 0
            for mi, (blk, (k, g), s_in) in enumerate(ml):
                a = ACC + 4*blk
                w = SETW[st] + (k*3 + g)*4; x = SETX[st] + 4*s_in
                c = f'v[{a}:{a+3}]'
                if t == 0 and blk not in seen: c = '0'
                seen.add(blk)
                if o.swapab: A(f'v_mfma_f32_16x16x32_bf16 v[{a}:{a+3}], v[{x}:{x+3}], v[{w}:{w+3}], {c}')
                else: A(f'v_mfma_f32_16x16x32_bf16 v[{a}:{a+3}], v[{w}:{w+3}], v[{x}:{x+3}], {c}')
                if t == 0 and o.b0late:
                    if mi == o.b0late - 1:
                        A('s_barrier'); TR(); self.sp('B0')
                    due = max(0, mi + 1 - o.b0late) * len(fill) // (50 - o.b0late)
                else:
                    due = (mi + 1) * len(fill) // span if fill else 0
                while ri < min(due, len(fill)):
                    A(fill[ri]); ri += 1
                for ins in extra.get(mi, []): A(ins)
            assert ri == len(fill)
            if t + 1 < NSTEP:
                A('s_waitcnt lgkmcnt(0)')
                A('s_barrier')
                TR(); self.sp(f'B{t+1}')
        TR(); self.sp('lend')
        A('s_waitcnt lgkmcnt(0)')
        A('s_nop 6')
        for ph in range(4):
            if ph < max(o.pvalu, o.pskip):
                if ph > 0: A('s_barrier'); TR()
                continue
            blks = []
            for s in (ph, ph + 4):
                for g in range(3):
                    if g == 2 and ((s >= 4) != hi): continue
                    blk = (g*8 + s) if g < 2 else 16 + (s - 4 if hi else s)
                    blks.append((blk, g, s))
            assert len(blks) == 5
            for bi, (blk, g, s) in enumerate(blks):
                a = ACC + 4*blk; U = E_U + 4*bi; sc = E_SC + 4*g; sh = E_SH + 4*g
                for p in (0, 2): A(f'v_pk_fma_f32 v[{U+p}:{U+p+1}], v[{a+p}:{a+p+1}], v[{sc+p}:{sc+p+1}], v[{sh+p}:{sh+p+1}]')
            for i in range(20): A(f'v_exp_f32 v{E_E+i}, v{E_U+i}')
            if ph > 0:
                A('s_waitcnt lgkmcnt(0)'); A('s_barrier'); TR()
            for i in range(0, 20, 2): A(f'v_pk_fma_f32 v[{E_E+i}:{E_E+i+1}], v[{E_E+i}:{E_E+i+1}], v[{E_C}:{E_C+1}], v[{E_C}:{E_C+1}]')
            for i in range(20): A(f'v_rcp_f32 v{E_E+i}, v{E_E+i}')
            for i in range(0, 20, 2): A(f'v_pk_mul_f32 v[{E_U+i}:{E_U+i+1}], v[{E_U+i}:{E_U+i+1}], v[{E_E+i}:{E_E+i+1}]')
            for bi, (blk, g, s) in enumerate(blks):
                U = E_U + 4*bi; F = E_F + 2*bi
                A(f'v_cvt_pk_bf16_f32 v{F}, v{U}, v{U+1}')
                A(f'v_cvt_pk_bf16_f32 v{F+1}, v{U+2}, v{U+3}')
                A(f'ds_write_b64 v{V_OUT}, v[{F}:{F+1}] offset:{s*32*ORS + nc[g]*32}')
        A('s_waitcnt lgkmcnt(0)'); A('s_barrier'); TR()
        self.tr_end(V_TRC, 0)
        self.sp('E3')
        if o.spinpt:
            A('s_cmp_eq_u32 s2, 0'); A(f's_cbranch_scc0 L_end_{tag}')
            A('s_cmp_eq_u32 s23, 0'); A(f's_cbranch_scc0 L_end_{tag}')
            A('s_waitcnt lgkmcnt(0)')
            A('s_sub_u32 s44, s92, s60'); A(f's_mul_i32 s44, s44, {o.spinm}')
            self.lab(f'L_spin_{tag}')
            A('s_memrealtime s[66:67]'); A('s_waitcnt lgkmcnt(0)')
            A('s_sub_u32 s45, s66, s60'); A('s_cmp_lt_u32 s45, s44'); A(f's_cbranch_scc1 L_spin_{tag}')
        self.lab(f'L_end_{tag}')
        A('s_endpgm')
        body = self.L[start:]
        sizes = isizes(body)
        out = []; off = 0; page = 1
        total = sum(sizes)
        npages = (total + 4*8 + 4095) // 4096
        for l, sz in zip(body, sizes):
            if o.pads and off >= page*4096 and sz and page <= 3:
                nxt = f'L_pad_{tag}_2' if page == 1 else f'L_warm_{tag}'
                out.append(f'L_pad_{tag}_{page}:'); out.append(f'  s_cbranch_scc1 {nxt}')
                off += 4; page += 1
            out.append(l); off += sz
        if o.pads:
            assert page == 4, f'expected 4 pages, got {page} (size {off})'
            assert off <= 4*4096 + (4096 if o.dbg or o.spinpt else 0), off
        self.L = self.L[:start] + out
        self.sizes[tag] = off

    def build(self):
        o = self.opt; R = self.raw
        self.sizes = {}
        R(HEADER.rstrip('\n'))
        R(f'; @launch grid=(256,1,1) block=(512,1,1) lds={LDS_BYTES}')
        R('.amdgcn_target "amdgcn-amd-amdhsa--gfx950"'); R('.text'); R(f'.globl {NAME}'); R('.p2align 8'); R(f'.type {NAME},@function')
        self.lab(NAME)
        s0 = len(self.L)
        self.entry()
        self.producer()
        self.sizes['prod'] = sum(isizes(self.L[s0:]))
        R('.p2align 12')
        self.consumer(False)
        R('.p2align 12')
        self.consumer(True)
        R('.section .rodata,"a"'); R('.p2align 6'); R(f'.amdhsa_kernel {NAME}')
        R('  .amdhsa_next_free_vgpr 256'); R('  .amdhsa_next_free_sgpr 96'); R('  .amdhsa_accum_offset 256')
        R('  .amdhsa_group_segment_fixed_size 0'); R('  .amdhsa_kernarg_size 72'); R('  .amdhsa_user_sgpr_count 2')
        R('  .amdhsa_user_sgpr_kernarg_segment_ptr 1'); R('  .amdhsa_system_sgpr_workgroup_id_x 1'); R('.end_amdhsa_kernel')
        sys.stderr.write(f'sizes: {self.sizes}\n')
        return '\n'.join(self.L) + '\n'

def parse(argv):
    p = argparse.ArgumentParser()
    p.add_argument('-o', default='standalone__batchnorm__sampling.s')
    for k, v in dict(dbg=0, rdspan=48, nodma=0, touch=1, t0=3, prio=0, meta=0, pads=1, pstep=8, unroll_p=0, spinm=20, cyc=0, b0late=20, wmode=1, tl=3, wa=0, swapab=0, order=5, pvalu=0, pspread=0, pskip=0, mrot=0, stouch=0, todd=0, xmulti=0, nostore=0, lazy=1).items():
        p.add_argument('--' + k, type=int, default=v)
    p.add_argument('--spinpt', default='')
    p.add_argument('--early', default='-2:x0a,t0,x0b,w0,t1,t2,w1;-1:x1a,x1b,w2,t3;0:w3,x2a;1:w4,x2b,t4;2:w5,x3a;3:w6,x3b')
    p.add_argument('--d0', type=int, default=2)
    p.add_argument('--xaux', default=''); p.add_argument('--waux', default=''); p.add_argument('--saux', default='nt'); p.add_argument('--saux2', default=''); p.add_argument('--sauxn', type=int, default=3)
    return p.parse_args(argv)

from gen import META
if __name__ == '__main__':
    o = parse(sys.argv[1:])
    s = Gen(o).build()
    if o.meta: s += META.format(name=NAME)
    open(o.o, 'w').write(s)
```

```python
import sys, argparse, subprocess, re

NAME = 'standalone__batchnorm__sampling_kernel'
HEADER = open('standalone__batchnorm__sampling.s.ref').read().split('; Override launch')[0]

XSLOT = 32768; NXS = 3
WBASE = XSLOT*NXS; WSLOT = 16384; NWS = 4
LDS_BYTES = WBASE + WSLOT*NWS
ORS = 176
import os
ORS = int(os.environ.get('ORS', ORS))
PB = 49152
NSTEP = 20
XBYTES = 1024*8*640*2; WBYTES = 3*640*640*2

SETX = [0, 68]; SETW = [32, 100]
V_RAW = 136
V_XA = [160, 161]; V_XB = [162, 163]; V_W = 164
V_OUT = 165; V_PA = 166; V_PW = 167
V_TRC = 168
ACC = 176
E_U = 0; E_E = 20; E_F = 40; E_SC = 52; E_SH = 136; E_C = 64

_size_cache = {}
def isizes(lines):
    todo = []
    def key(l):
        l = l.split(';')[0].strip()
        if not l or l.endswith(':') or l.startswith('.'): return None
        l = re.sub(r'\bL_[A-Za-z0-9_]+', '0', l)
        return l
    for l in lines:
        k = key(l)
        if k is not None and k not in _size_cache and k not in todo: todo.append(k)
    if todo:
        r = subprocess.run(['llvm-mc', '-triple=amdgcn-amd-amdhsa', '-mcpu=gfx950', '-show-encoding'], input='\n'.join(todo) + '\n', capture_output=True, text=True)
        enc = re.findall(r'encoding: \[([^\]]*)\]', r.stdout)
        assert len(enc) == len(todo), (len(enc), len(todo), r.stderr[:2000])
        for k, e in zip(todo, enc): _size_cache[k] = len(e.split(','))
    return [0 if key(l) is None else _size_cache[key(l)] for l in lines]

class Gen:
    def __init__(self, opt):
        self.L = []; self.opt = opt; self.tri = 0; self.uid = 0
    def A(self, s): self.L.append('  ' + s)
    def lab(self, s): self.L.append(s + ':')
    def raw(self, s): self.L.append(s)
    def tr(self, vreg):
        if self.opt.dbg != 2: return
        A = self.A; i = self.tri
        if i > 0:
            A('s_waitcnt lgkmcnt(0)')
            A(f'v_writelane_b32 v{vreg}, s{88 + 2*((i-1)&1)}, {i-1}')
        A(f's_mem{"time" if self.opt.cyc else "realtime"} s[{88 + 2*(i&1)}:{89 + 2*(i&1)}]')
        self.tri += 1
    def tr_end(self, vreg, slot):
        if self.opt.dbg != 2: return
        A = self.A; i = self.tri
        A('s_waitcnt lgkmcnt(0)')
        A(f'v_writelane_b32 v{vreg}, s{88 + 2*((i-1)&1)}, {i-1}')
        A(f'v_writelane_b32 v{vreg}, s60, 63')
        A(f's_cmp_eq_u32 s23, 0'); A(f's_cbranch_scc0 L_trskip{self.uid}')
        A('v_mbcnt_lo_u32_b32 v2, -1, 0'); A('v_mbcnt_hi_u32_b32 v2, -1, v2')
        A(f's_lshl_b32 s44, s2, 9'); A(f's_add_u32 s44, s44, {262144 + slot*256}')
        A('v_lshl_add_u32 v2, v2, 2, s44')
        A(f'global_store_dword v2, v{vreg}, s[62:63]')
        self.lab(f'L_trskip{self.uid}'); self.uid += 1
    def sp(self, name):
        if self.opt.spinpt == name: self.A('s_memrealtime s[92:93]')

    def div10(self, vrow, vpiece, vsrc):
        A = self.A
        A(f'v_mul_u32_u24 v{vrow}, 6554, v{vsrc}')
        A(f'v_lshrrev_b32 v{vrow}, 16, v{vrow}')
        A(f'v_mul_u32_u24 v{vpiece}, 10, v{vrow}')
        A(f'v_sub_u32 v{vpiece}, v{vsrc}, v{vpiece}')

    def entry(self):
        A = self.A; o = self.opt
        A('s_cmp_ge_u32 s2, 256'); A('s_cbranch_scc1 L_exit')
        A('s_load_dwordx16 s[4:19], s[0:1], 0')
        if o.dbg or o.spinpt:
            A('s_memrealtime s[60:61]')
            A('s_load_dwordx2 s[62:63], s[0:1], 64')
        A('v_lshrrev_b32 v1, 6, v0')
        A('v_and_b32 v0, 63, v0')
        A('s_and_b32 s20, s2, 7')
        A('v_readfirstlane_b32 s23, v1')
        A('s_lshr_b32 s25, s2, 3')
        A('s_lshr_b32 s22, s25, 3')
        A('s_and_b32 s21, s25, 7')
        A('s_lshl_b32 s20, s20, 2')
        A('s_add_u32 s20, s20, s22')
        A('s_mul_i32 s26, s20, 327680')
        A('s_mul_i32 s27, s21, 160')
        A('s_cmp_lt_u32 s23, 4')
        A('s_cbranch_scc1 L_producer')
        A('s_sub_u32 s23, s23, 4')
        A('v_min_u32 v3, 19, v0'); A('s_mul_i32 s29, s23, 20'); A('v_add_u32 v3, s29, v3')
        A('v_lshlrev_b32 v3, 1, v3'); A('v_add_u32 v3, s27, v3')
        A('s_waitcnt lgkmcnt(0)')
        for i, sp in enumerate([8, 10, 12, 14]):
            A(f'global_load_ushort v{V_RAW+i}, v3, s[{sp}:{sp+1}]')
        A('s_bitcmp1_b32 s23, 0'); A('s_cbranch_scc1 L_cons_hi'); A('s_branch L_cons_lo')
        self.lab('L_producer')

    def touch_setup(self):
        A = self.A; o = self.opt
        A('s_and_b32 s29, s23, 1')
        A('s_and_b32 s28, s23, 2')
        A('s_cmp_eq_u32 s28, 0'); A('s_cbranch_scc0 L_touch_w')
        A('s_lshl_b32 s30, s29, 4')
        if o.xmulti:
            A('v_and_b32 v5, 15, v0'); A('v_add_u32 v3, s30, v5'); A('v_mul_u32_u24 v3, 10240, v3')
            A('v_lshrrev_b32 v5, 4, v0'); A('v_lshl_add_u32 v3, v5, 7, v3')
            A('s_mul_i32 s30, s21, 1280'); A('v_add_u32 v3, s30, v3')
            A(f'v_cmp_gt_u32 vcc, {16*o.xmulti}, v0')
        else:
            A('v_add_u32 v3, s30, v0'); A('v_mul_u32_u24 v3, 10240, v3')
            A('s_mul_i32 s30, s21, 1280'); A('v_add_u32 v3, s30, v3')
            A('v_cmp_gt_u32 vcc, 16, v0')
        A('s_mov_b32 s53, s26'); A('s_movk_i32 s55, 128'); A('s_mov_b32 s58, s34')
        if o.wmode == 2: A('s_mov_b32 s54, -1'); A('v_mov_b32 v19, 0')
        if o.mrot:
            A('s_add_u32 s67, s53, 1280'); A('s_add_u32 s53, s53, s69')
        A('s_waitcnt lgkmcnt(0)')
        A('s_mov_b32 s56, s4'); A('s_and_b32 s57, s5, 0xffff')
        A('s_branch L_touch_j')
        self.lab('L_touch_w')
        self.div10(3, 4, 0)
        if o.wmode == 0:
            A('s_mul_i32 s30, s25, 6'); A('s_mul_i32 s31, s29, 3'); A('s_add_u32 s30, s30, s31')
            A('v_add_u32 v3, s30, v3')
            A('v_lshrrev_b32 v6, 6, v3')
            A('v_and_b32 v3, 63, v3')
            A('v_mul_u32_u24 v3, 1280, v3')
            A('v_lshl_add_u32 v3, v4, 7, v3')
            A('s_mov_b32 s30, 819200'); A('v_mul_lo_u32 v6, v6, s30'); A('v_add_u32 v3, v3, v6')
            A('v_cmp_gt_u32 vcc, 30, v0')
            A('s_mov_b32 s53, 0'); A('s_mov_b32 s55, 81920'); A('s_mov_b32 s58, s38')
        elif o.wmode == 1:
            A('s_lshl_b32 s30, s2, 3'); A('s_lshl_b32 s31, s29, 2'); A('s_add_u32 s30, s30, s31')
            A('v_add_u32 v3, s30, v3')
            A('v_mul_u32_u24 v3, 1280, v3')
            A('v_lshl_add_u32 v3, v4, 7, v3')
            A('v_cmp_gt_u32 vcc, 40, v0')
            first = min(int(e[1:]) for part in o.early.split(';') for e in part.split(':')[1].split(',') if e and e[0] == 't')
            A(f's_mov_b32 s53, {(-first*0x4000000) & 0xffffffff:#x}'); A('s_mov_b32 s55, 0x4000000'); A('s_mov_b32 s58, s38')
        else:
            A('s_lshl_b32 s30, s2, 3'); A('s_lshl_b32 s31, s29, 2'); A('s_add_u32 s30, s30, s31')
            A('v_add_u32 v5, s30, v3')
            A('v_mul_u32_u24 v5, 1280, v5')
            A('v_lshl_add_u32 v5, v4, 7, v5')
            A('v_cmp_gt_u32 vcc, 40, v0'); A('v_mov_b32 v6, 0x40000000'); A('s_nop 0')
            A('v_cndmask_b32 v19, v6, v5, vcc')
            A('s_mul_i32 s30, s25, 6'); A('s_mul_i32 s31, s29, 3'); A('s_add_u32 s30, s30, s31')
            A('v_add_u32 v3, s30, v3')
            A('v_lshrrev_b32 v6, 6, v3')
            A('v_and_b32 v3, 63, v3')
            A('v_mul_u32_u24 v3, 1280, v3')
            A('v_lshl_add_u32 v3, v4, 7, v3')
            A('s_mov_b32 s30, 819200'); A('v_mul_lo_u32 v6, v6, s30'); A('v_add_u32 v3, v3, v6')
            A('v_cmp_gt_u32 vcc, 30, v0')
            A('s_mov_b32 s53, 0x80000000'); A('s_mov_b32 s55, 81920'); A('s_mov_b32 s58, s38'); A('s_mov_b32 s54, 0x7fffffff')
        A('s_waitcnt lgkmcnt(0)')
        A('s_mov_b32 s56, s6'); A('s_and_b32 s57, s7, 0xffff')
        self.lab('L_touch_j')
        A('s_mov_b32 s59, s35')
        A('v_mov_b32 v4, 0x40000000')
        A('v_cndmask_b32 v20, v4, v3, vcc')
        if o.wmode == 2:
            A('s_cmp_eq_u32 s54, -1'); A('s_cselect_b64 vcc, -1, 0'); A('s_cselect_b32 s52, s53, 0')
            A('s_nop 1')
            A('v_cndmask_b32 v19, v19, v20, vcc')

    def producer(self):
        A = self.A; o = self.opt
        A('v_lshrrev_b32 v2, 3, v0')
        A('v_lshrrev_b32 v3, 4, v0')
        A('s_and_b32 s29, s23, 1'); A('s_lshl_b32 s29, s29, 2')
        A('v_add_u32 v3, s29, v3')
        A('v_and_b32 v4, 7, v0')
        A('v_xor_b32 v4, v4, v3')
        A('v_mul_u32_u24 v2, 10240, v2')
        A('v_lshl_add_u32 v10, v4, 4, v2')
        A('s_mul_i32 s46, s23, 81920'); A('s_add_u32 s46, s46, s26')
        A('s_lshl_b32 s41, s23, 10')
        A('s_mov_b32 s51, 98304')
        A('s_mov_b32 s34, %d' % XBYTES); A('s_mov_b32 s35, 0x20000')
        done = set()
        def setup_w():
            if 'w' in done: return
            done.add('w')
            A('v_lshl_add_u32 v7, s23, 6, v0')
            for j in range(4):
                if j: A('v_add_u32 v7, 0x100, v7')
                self.div10(3, 4, 7)
                A('v_bfe_u32 v5, v3, 2, 2'); A('v_lshlrev_b32 v5, 3, v5')
                A('v_bfe_u32 v6, v3, 4, 1'); A('v_lshl_add_u32 v5, v6, 2, v5')
                A('v_and_b32 v6, 3, v3'); A('v_add_u32 v5, v5, v6')
                A('v_mul_u32_u24 v5, 1280, v5')
                A('v_lshl_add_u32 v5, v4, 4, v5')
                A('v_lshrrev_b32 v6, 5, v3')
                A('v_mul_u32_u24 v6, 819200, v6')
                A(f'v_add_u32 v{11+j}, v5, v6')
            A('s_lshl_b32 s42, s23, 10'); A(f's_add_u32 s42, s42, {WBASE}')
            A('s_mov_b32 s47, s27')
            A('s_mov_b32 s43, 0')
            A('s_movk_i32 s48, 0x4000'); A('s_mov_b32 s49, 40960'); A('s_mov_b32 s50, 0xffff')
            A('s_mov_b32 s39, s35')
        def setup_k():
            if 'k' in done: return
            done.add('k')
            A('s_waitcnt lgkmcnt(0)')
            A('s_mov_b32 s32, s4'); A('s_and_b32 s33, s5, 0xffff')
            A('s_mov_b32 s36, s6'); A('s_and_b32 s37, s7, 0xffff')
        def setup_t():
            if 't' in done or not o.touch: return
            done.add('t')
            self.touch_setup()
        A('s_mov_b32 s38, %d' % WBYTES)
        if not o.lazy:
            setup_w(); setup_t(); setup_k()
        if o.stouch:
            A('s_mul_i32 s82, s21, 1280'); A('s_add_u32 s82, s82, s46')
            A('s_add_u32 s80, s4, s82'); A('s_addc_u32 s81, s5, 0')
        sstate = [0]
        def stouch(ch):
            if ch > 9: return
            d = (ch - sstate[0]) * 128; sstate[0] = ch
            if d: A(f's_add_u32 s80, s80, {d}'); A('s_addc_u32 s81, s81, 0')
            for i in range(8):
                if o.stouch == 1: A(f's_load_dword s83, s[80:81], {i*10240}')
                elif o.stouch == 2: A(f's_load_dwordx2 s[84:85], s[80:81], {i*10240 + 60}')
                else:
                    A(f's_load_dword s83, s[80:81], {i*10240}'); A(f's_load_dword s83, s[80:81], {i*10240 + 64}')
        issued = []
        TR = (lambda: self.tr(30)) if not o.stouch else (lambda: None)
        self.tri = 0
        def dma(txt):
            if not o.nodma: A(txt)
        xseq = [0]; wseq = [0]
        def x_half(X, second, wrap=False):
            assert xseq[0] == 2*X + int(second), (xseq, X, second); xseq[0] += 1
            if wrap and o.mrot and not second:
                A('s_cmp_eq_u32 s46, s64'); A('s_cselect_b32 s46, s65, s46')
            n = (8 - o.xsplit) if second else o.xsplit
            if X < o.xsfrom: n = 4
            A('s_mov_b32 m0, s41')
            A('s_addk_i32 s41, %d' % (n*0x1000))
            for i in range(n):
                dma(f'buffer_load_dwordx4 v10, s[32:35], s46 offen {o.xaux} lds')
                issued.append(('x', X))
                if i < n - 1: A('s_addk_i32 m0, 0x1000')
                A('s_addk_i32 s46, %d' % (1280 if not (second and i == n - 1) else 1280 - 10240 + 128))
            if second:
                A('s_sub_u32 s44, s41, s51'); A('s_cselect_b32 s41, s41, s44')
        def w_step(t, wrap=False):
            assert wseq[0] == t, (wseq, t); wseq[0] += 1
            if wrap and o.mrot:
                A('s_cmp_eq_u32 s47, s66'); A('s_cselect_b32 s47, s27, s47')
            A('s_add_u32 m0, s42, s43')
            A('s_add_u32 s43, s43, s48')
            for j in range(4):
                dma(f'buffer_load_dwordx4 v{11+j}, s[36:39], s47 offen {o.waux} lds')
                issued.append(('w', t))
                if j < 3:
                    A('s_addk_i32 m0, 0x1000')
                    A('s_and_b32 s43, s43, s50' if j == 0 else 's_nop 0')
            A('s_add_u32 s47, s47, s49')
        tstate = [0]; tfirst = [0, 0]
        def touch(ch, wrap=False):
            if not o.touch: return
            if ch > 9 and (o.dbg == 2 or o.unroll_p): return
            for _ in range(ch - tstate[0]): A('s_add_u32 s53, s53, s55')
            if wrap and o.mrot:
                A('s_cmp_eq_u32 s53, s67'); A('s_cselect_b32 s53, s26, s53')
            tstate[0] = ch
            if o.wmode == 2 and not tfirst[0]:
                tfirst[0] = 1
                if ch: A(f's_cmp_eq_u32 s54, -1'); A('s_cselect_b32 s52, s53, 0')
                A(f'buffer_load_dword v21, v19, s[56:59], s52 offen')
            else:
                if o.wmode == 2 and ch >= o.tw0 and not tfirst[1]:
                    tfirst[1] = 1; A('s_and_b32 s53, s53, s54')
                A(f'buffer_load_dword v21, v20, s[56:59], s53 offen')
            issued.append(('t', ch))
        def need(step):
            req = [i for i, tg in enumerate(issued) if tg == ('x', step >> 1) or tg == ('w', step)]
            return len(issued) - 1 - max(req)
        def dummyh(frac):
            n = 20 // frac
            for i in range(0, n, 2): A(f'v_pk_fma_f32 v[{70+i}:{71+i}], v[{100+i}:{101+i}], v[{120}:{121}], v[{122}:{123}]')
            for i in range(n): A(f'v_exp_f32 v{130+i}, v{70+i}')
            for i in range(0, n, 2): A(f'v_pk_fma_f32 v[{130+i}:{131+i}], v[{130+i}:{131+i}], v[{120}:{121}], v[{120}:{121}]')
            for i in range(n): A(f'v_rcp_f32 v{130+i}, v{130+i}')
            for i in range(0, n, 2): A(f'v_pk_mul_f32 v[{70+i}:{71+i}], v[{70+i}:{71+i}], v[{130+i}:{131+i}]')
            for i in range(0, n, 2): A(f'v_cvt_pk_bf16_f32 v{150+i//2}, v{70+i}, v{71+i}')
        def sync(t):
            if o.pspread and t >= 19 - o.pspread * o.pskip: dummyh(o.pspread)
            TR()
            n = need(t + 2) if t + 2 < NSTEP else None
            if n is not None: A(f's_waitcnt vmcnt({n})')
            TR()
            A('s_barrier')
            return n
        TR()
        def do(item):
            if item[0] == 't': setup_t()
            if item[0] == 'w': setup_w()
            setup_k()
            if item[0] == 'w': w_step(int(item[1:]))
            elif item[0] == 'x': x_half(int(item[1:-1]), item[-1] == 'b')
            elif item[0] == 't': touch(int(item[1:]))
            elif item[0] == 's': stouch(int(item[1:]))
        early = {}
        for part in o.early.split(';'):
            k, v = part.split(':'); early[int(k)] = [e for e in v.split(',') if e]
        for it in range(-2, 2*o.d0):
            for e in early.get(it, []): do(e)
            if it == -2: self.store_addr()
            sync(it)
        if o.dbg == 2 or o.unroll_p:
            for D in range(o.d0, 7):
                w_step(2*D + 3 + o.wa, True); x_half(D + 2, 0, True)
                if not o.todd and o.tl: (stouch(D + o.tl) if o.stouch else touch(D + o.tl, True))
                for e in early.get(2*D, []): do(e)
                sync(2*D)
                w_step(2*D + 4 + o.wa, True); x_half(D + 2, 1, True)
                if o.todd: touch(D + o.tl, True)
                sync(2*D + 1)
        else:
            A(f's_movk_i32 s45, {7 - o.d0}')
            self.lab('L_ploop')
            mark = len(self.L); ns = []
            for D in range(o.d0, 7):
                if D == o.d0 + 1: body_end = len(self.L)
                w_step(2*D + 3 + o.wa, True); x_half(D + 2, 0, True)
                if not o.todd and o.tl: touch(D + o.tl, True)
                a = sync(2*D)
                w_step(2*D + 4 + o.wa, True); x_half(D + 2, 1, True)
                if o.todd: touch(D + o.tl, True)
                b = sync(2*D + 1)
                ns.append((a, b))
            if len(set(ns)) != 1:
                mn = (min(a for a, b in ns), min(b for a, b in ns))
                sys.stderr.write(f'loop vmcnt variants {ns} -> {mn}\n')
            body = self.L[mark:body_end]
            mn = (min(a for a, b in ns), min(b for a, b in ns))
            it = iter(mn)
            body = [f'  s_waitcnt vmcnt({next(it)})' if l.strip().startswith('s_waitcnt vmcnt') else l for l in body]
            self.L = self.L[:mark] + body
            A('s_sub_u32 s45, s45, 1'); A('s_cmp_lg_u32 s45, 0'); A('s_cbranch_scc1 L_ploop')
        w_step(17 + o.wa); x_half(9, 0); sync(14)
        w_step(18 + o.wa); x_half(9, 1); sync(15)
        if not o.wa: w_step(19)
        def dummy(nph):
            for _ in range(nph):
                for i in range(0, 20, 2): A(f'v_pk_fma_f32 v[{70+i}:{71+i}], v[{100+i}:{101+i}], v[{120}:{121}], v[{122}:{123}]')
                for i in range(20): A(f'v_exp_f32 v{130+i}, v{70+i}')
                for i in range(0, 20, 2): A(f'v_pk_fma_f32 v[{130+i}:{131+i}], v[{130+i}:{131+i}], v[{120}:{121}], v[{120}:{121}]')
                for i in range(20): A(f'v_rcp_f32 v{130+i}, v{130+i}')
                for i in range(0, 20, 2): A(f'v_pk_mul_f32 v[{70+i}:{71+i}], v[{70+i}:{71+i}], v[{130+i}:{131+i}]')
                for i in range(0, 20, 2): A(f'v_cvt_pk_bf16_f32 v{150+i//2}, v{70+i}, v{71+i}')
        if o.pvalu >= 1: dummy(1)
        sync(16)
        if o.pvalu >= 2: dummy(1)
        sync(17)
        if o.pvalu >= 3: dummy(1)
        sync(18)
        if o.stouch: A('s_waitcnt lgkmcnt(0)')
        for ph in range(4):
            A('s_barrier')
            for j in range(3): A(f'ds_read_b128 v[{40+12*(ph&1)+4*j}:{43+12*(ph&1)+4*j}], v{22+j} offset:{ph*32*ORS}')
            for j in range(3 if not o.nostore else 0):
                A(f's_waitcnt lgkmcnt({2-j})')
                A(f'buffer_store_dwordx4 v[{40+12*(ph&1)+4*j}:{43+12*(ph&1)+4*j}], v{26+j}, s[72:75], s76 offen {o.saux if ph < o.sauxn else o.saux2}')
            if ph < 3: A('s_addk_i32 s76, 1280')
        if o.dbg == 2 and not o.stouch:
            A('s_waitcnt vmcnt(0)'); TR(); self.tr_end(30, 1)
        self.lab('L_exit')
        A('s_endpgm')

    def store_addr(self):
        A = self.A
        A('s_mov_b32 s72, s16'); A('s_and_b32 s73, s17, 0xffff'); A('s_mov_b32 s74, s34'); A('s_mov_b32 s75, s35')
        A('s_lshr_b32 s77, s23, 1')
        A('s_and_b32 s78, s23, 1')
        A('s_mul_i32 s76, s77, 5120'); A('s_add_u32 s76, s76, s26'); A('s_add_u32 s76, s76, s27')
        A(f's_mul_i32 s77, s77, {4*32*ORS}')
        A(f's_mul_i32 s79, s78, {16*ORS}'); A('s_add_u32 s77, s77, s79')
        A('s_mul_i32 s78, s78, 163840')
        for j in range(3):
            A(f'v_add_u32 v3, {64*j}, v0')
            if j == 2: A('v_min_u32 v3, 159, v3')
            self.div10(4, 5, 3)
            A(f'v_mul_u32_u24 v6, {ORS}, v4')
            A(f'v_lshl_add_u32 v6, v5, 4, v6')
            A(f'v_add_u32 v{22+j}, s77, v6')
            A(f'v_mul_u32_u24 v6, 10240, v4')
            A(f'v_lshl_add_u32 v6, v5, 4, v6')
            A(f'v_add_u32 v{26+j}, s78, v6')
        A('v_cmp_gt_u32 vcc, 32, v0')
        A('v_mov_b32 v7, 0x40000000')
        A('s_nop 0')
        A('v_cndmask_b32 v28, v7, v28, vcc')

    def mfma_list(self, hi):
        out = []
        for s_in in range(8):
            for k in range(3):
                s_out = s_in + 1 - k
                if not 0 <= s_out < 8: continue
                out.append((s_out, (k, 0), s_in))
                out.append((8 + s_out, (k, 1), s_in))
                if (not hi and s_out < 4): out.append((16 + s_out, (k, 2), s_in))
                if (hi and s_out >= 4): out.append((16 + s_out - 4, (k, 2), s_in))
        assert len(out) == 55
        od = self.opt.order
        sval = lambda b: (b % 8) if b < 16 else (b - 16 + (4 if hi else 0))
        if od == 2: out.sort(key=lambda e: (e[0], e[1][0]))
        elif od == 3: out.sort(key=lambda e: (sval(e[0]), e[1][1], e[1][0]))
        elif od == 5: out.sort(key=lambda e: (e[0], -e[1][0]) if e[0] % 2 else (e[0], e[1][0]))
        elif od == 6: out.sort(key=lambda e: (e[1][1], sval(e[0]), e[1][0] if sval(e[0]) % 2 == 0 else -e[1][0]))
        return out
    def ncols(self, hi): return [3, 4, 2] if hi else [0, 1, 2]
    def reads(self, step, hi):
        st = step & 1
        xs = (step >> 1) % NXS; kk = step & 1; ws = step % NWS
        nc = self.ncols(hi)
        xr = []
        for s in range(8):
            va = (V_XA if xs < 2 else V_XB)[kk]
            off = (xs*XSLOT if xs < 2 else 0) + s*4096
            d = SETX[st] + 4*s
            xr.append(f'ds_read_b128 v[{d}:{d+3}], v{va} offset:{off}')
        wr = []
        for k in range(3):
            for g in range(3):
                for u in range(2):
                    d = SETW[st] + (k*3 + g)*4 + 2*u
                    off = ws*WSLOT + k*5120 + u*2560 + nc[g]*32
                    wr.append(f'ds_read_b64_tr_b16 v[{d}:{d+1}], v{V_W} offset:{off}')
        r = []
        while xr or wr:
            if wr: r.append(wr.pop(0))
            if wr: r.append(wr.pop(0))
            if xr: r.append(xr.pop(0))
        return r
    def params_code(self):
        M, V, G, B = V_RAW, V_RAW+1, V_RAW+2, V_RAW+3
        c = ['s_waitcnt vmcnt(0)']
        for r in (M, V, G, B): c.append(f'v_lshlrev_b32 v{r}, 16, v{r}')
        c += [f'v_add_f32 v{V}, 0x3727c5ac, v{V}', f'v_rsq_f32 v{V}, v{V}', f'v_mul_f32 v{G}, 0xbfb8aa3b, v{G}',
              f'v_mul_f32 v{B}, 0xbfb8aa3b, v{B}', f'v_mul_f32 v{V_RAW+4}, v{G}, v{V}', f'v_fma_f32 v{V_RAW+5}, -v{M}, v{V_RAW+4}, v{B}']
        return c

    def consumer(self, hi):
        A = self.A; o = self.opt
        tag = 'hi' if hi else 'lo'
        start = len(self.L)
        self.lab(f'L_cons_{tag}')
        nc = self.ncols(hi)
        A('s_lshr_b32 s28, s23, 1')
        if o.pads:
            A('s_cmp_eq_u32 s28, 0'); A(f's_cbranch_scc1 L_pad_{tag}_1')
            A('s_cmp_eq_u32 s28, 1'); A(f's_branch L_pad_{tag}_3')
            self.lab(f'L_warm_{tag}')
        A('v_and_b32 v1, 15, v0')
        A('v_lshrrev_b32 v2, 4, v0')
        A('v_lshrrev_b32 v3, 1, v1')
        A('v_xor_b32 v3, v3, v2')
        A('v_lshlrev_b32 v3, 4, v3')
        A('v_lshl_add_u32 v3, v1, 7, v3')
        A('s_lshl_b32 s29, s28, 11')
        A(f'v_add_u32 v{V_XA[0]}, s29, v3')
        A(f'v_xor_b32 v{V_XA[1]}, 64, v{V_XA[0]}')
        A(f'v_add_u32 v{V_XB[0]}, 0x10000, v{V_XA[0]}')
        A(f'v_add_u32 v{V_XB[1]}, 0x10000, v{V_XA[1]}')
        A('v_lshrrev_b32 v3, 2, v1')
        A('v_lshl_add_u32 v3, v2, 2, v3')
        A('v_mul_u32_u24 v3, 160, v3')
        A('v_and_b32 v4, 3, v1')
        A('v_lshl_add_u32 v3, v4, 3, v3')
        A(f'v_add_u32 v{V_W}, {WBASE}, v3')
        A('s_lshl_b32 s29, s28, 4')
        A('v_add_u32 v3, s29, v1')
        A(f'v_mul_u32_u24 v3, {ORS}, v3')
        A(f'v_lshl_add_u32 v{V_OUT}, v2, 3, v3')
        A(f'v_lshlrev_b32 v3, 4, v2'); A(f'v_add_u32 v{V_PA}, {PB}, v3')
        A('v_min_u32 v3, 19, v0'); A('s_mul_i32 s29, s23, 20'); A('v_add_u32 v3, s29, v3')
        A(f'v_lshlrev_b32 v4, 2, v3'); A(f'v_add_u32 v{V_PW}, {PB}, v4')
        if o.prio: A(f's_setprio {o.prio}')
        A('s_cmp_lg_u32 s2, s2')
        TR = lambda: self.tr(V_TRC)
        self.tri = 0
        TR()
        A('s_barrier')
        TR(); self.sp('Bm1')
        for r in self.reads(0, hi): A(r)
        A('s_waitcnt lgkmcnt(0)')
        if not o.b0late:
            A('s_barrier')
            TR(); self.sp('B0')
        ml = self.mfma_list(hi)
        for t in range(NSTEP):
            st = t & 1
            fill = self.reads(t + 1, hi) if t + 1 < NSTEP else []
            span = o.rdspan
            extra = {}
            if t == o.pstep:
                pc = self.params_code()
                for i, ins in enumerate(pc): extra.setdefault(1 + 4*i, []).append(ins)
            if t == 17:
                extra.setdefault(50, []).append(f'ds_write_b32 v{V_PW}, v{V_RAW+4}')
                extra.setdefault(51, []).append(f'ds_write_b32 v{V_PW}, v{V_RAW+5} offset:320')
            if t == NSTEP - 1:
                fill = []
                for g in range(3):
                    fill.append(f'ds_read_b128 v[{E_SC+4*g}:{E_SC+4*g+3}], v{V_PA} offset:{nc[g]*64}')
                    fill.append(f'ds_read_b128 v[{E_SH+4*g}:{E_SH+4*g+3}], v{V_PA} offset:{320 + nc[g]*64}')
                fill += [f'v_mov_b32 v{E_C}, 0xbfb8aa3b', f'v_mov_b32 v{E_C+1}, 0xbfb8aa3b']
                span = 30
            seen = set(); ri = 0
            for mi, (blk, (k, g), s_in) in enumerate(ml):
                a = ACC + 4*blk
                w = SETW[st] + (k*3 + g)*4; x = SETX[st] + 4*s_in
                c = f'v[{a}:{a+3}]'
                if t == 0 and blk not in seen: c = '0'
                seen.add(blk)
                if o.agpr:
                    aa = 4*blk
                    cc = '0' if c == '0' else f'a[{aa}:{aa+3}]'
                    A(f'v_mfma_f32_16x16x32_bf16 a[{aa}:{aa+3}], v[{w}:{w+3}], v[{x}:{x+3}], {cc}')
                    due = 0
                    if t == 0 and o.b0late:
                        if mi == o.b0late - 1:
                            A('s_barrier'); TR(); self.sp('B0')
                        due = max(0, mi + 1 - o.b0late) * len(fill) // (50 - o.b0late)
                    else:
                        due = (mi + 1) * len(fill) // span if fill else 0
                    while ri < min(due, len(fill)):
                        A(fill[ri]); ri += 1
                    for ins in extra.get(mi, []): A(ins)
                    continue
                if o.swapab: A(f'v_mfma_f32_16x16x32_bf16 v[{a}:{a+3}], v[{x}:{x+3}], v[{w}:{w+3}], {c}')
                else: A(f'v_mfma_f32_16x16x32_bf16 v[{a}:{a+3}], v[{w}:{w+3}], v[{x}:{x+3}], {c}')
                if t == 0 and o.b0late:
                    if mi == o.b0late - 1:
                        A('s_barrier'); TR(); self.sp('B0')
                    due = max(0, mi + 1 - o.b0late) * len(fill) // (50 - o.b0late)
                else:
                    due = (mi + 1) * len(fill) // span if fill else 0
                while ri < min(due, len(fill)):
                    A(fill[ri]); ri += 1
                for ins in extra.get(mi, []): A(ins)
            assert ri == len(fill)
            if t + 1 < NSTEP:
                A('s_waitcnt lgkmcnt(0)')
                A('s_barrier')
                TR(); self.sp(f'B{t+1}')
        TR(); self.sp('lend')
        A('s_waitcnt lgkmcnt(0)')
        A('s_nop 6')
        for ph in range(4):
            if ph < max(o.pvalu, o.pskip):
                if ph > 0: A('s_barrier'); TR()
                continue
            blks = []
            for s in (ph, ph + 4):
                for g in range(3):
                    if g == 2 and ((s >= 4) != hi): continue
                    blk = (g*8 + s) if g < 2 else 16 + (s - 4 if hi else s)
                    blks.append((blk, g, s))
            assert len(blks) == 5
            for bi, (blk, g, s) in enumerate(blks):
                a = (ACC if not o.agpr else 68) + 4*blk; U = E_U + 4*bi; sc = E_SC + 4*g; sh = E_SH + 4*g
                for p in (0, 2): A(f'v_pk_fma_f32 v[{U+p}:{U+p+1}], v[{a+p}:{a+p+1}], v[{sc+p}:{sc+p+1}], v[{sh+p}:{sh+p+1}]')
            for i in range(20): A(f'v_exp_f32 v{E_E+i}, v{E_U+i}')
            if ph > 0:
                A('s_waitcnt lgkmcnt(0)'); A('s_barrier'); TR()
            for i in range(0, 20, 2): A(f'v_pk_fma_f32 v[{E_E+i}:{E_E+i+1}], v[{E_E+i}:{E_E+i+1}], v[{E_C}:{E_C+1}], v[{E_C}:{E_C+1}]')
            for i in range(20): A(f'v_rcp_f32 v{E_E+i}, v{E_E+i}')
            for i in range(0, 20, 2): A(f'v_pk_mul_f32 v[{E_U+i}:{E_U+i+1}], v[{E_U+i}:{E_U+i+1}], v[{E_E+i}:{E_E+i+1}]')
            for bi, (blk, g, s) in enumerate(blks):
                U = E_U + 4*bi; F = E_F + 2*bi
                A(f'v_cvt_pk_bf16_f32 v{F}, v{U}, v{U+1}')
                A(f'v_cvt_pk_bf16_f32 v{F+1}, v{U+2}, v{U+3}')
                A(f'ds_write_b64 v{V_OUT}, v[{F}:{F+1}] offset:{s*32*ORS + nc[g]*32}')
        A('s_waitcnt lgkmcnt(0)'); A('s_barrier'); TR()
        self.tr_end(V_TRC, 0)
        self.sp('E3')
        if o.spinpt:
            A('s_cmp_eq_u32 s2, 0'); A(f's_cbranch_scc0 L_end_{tag}')
            A('s_cmp_eq_u32 s23, 0'); A(f's_cbranch_scc0 L_end_{tag}')
            A('s_waitcnt lgkmcnt(0)')
            A('s_sub_u32 s44, s92, s60'); A(f's_mul_i32 s44, s44, {o.spinm}')
            self.lab(f'L_spin_{tag}')
            A('s_memrealtime s[66:67]'); A('s_waitcnt lgkmcnt(0)')
            A('s_sub_u32 s45, s66, s60'); A('s_cmp_lt_u32 s45, s44'); A(f's_cbranch_scc1 L_spin_{tag}')
        self.lab(f'L_end_{tag}')
        A('s_endpgm')
        body = self.L[start:]
        sizes = isizes(body)
        out = []; off = 0; page = 1
        total = sum(sizes)
        npages = (total + 4*8 + 4095) // 4096
        for l, sz in zip(body, sizes):
            if o.pads and off >= page*4096 and sz and page <= 3:
                nxt = f'L_pad_{tag}_2' if page == 1 else f'L_warm_{tag}'
                out.append(f'L_pad_{tag}_{page}:'); out.append(f'  s_cbranch_scc1 {nxt}')
                off += 4; page += 1
            out.append(l); off += sz
        if o.pads:
            assert page == 4, f'expected 4 pages, got {page} (size {off})'
            assert off <= 4*4096 + (4096 if o.dbg or o.spinpt else 0), off
        self.L = self.L[:start] + out
        self.sizes[tag] = off

    def build(self):
        o = self.opt; R = self.raw
        self.sizes = {}
        R(HEADER.rstrip('\n'))
        R(f'; @launch grid=(256,1,1) block=(512,1,1) lds={LDS_BYTES}')
        R('.amdgcn_target "amdgcn-amd-amdhsa--gfx950"'); R('.text'); R(f'.globl {NAME}'); R('.p2align 8'); R(f'.type {NAME},@function')
        self.lab(NAME)
        s0 = len(self.L)
        self.entry()
        self.producer()
        self.sizes['prod'] = sum(isizes(self.L[s0:]))
        R('.p2align 12')
        self.consumer(False)
        R('.p2align 12')
        self.consumer(True)
        R('.section .rodata,"a"'); R('.p2align 6'); R(f'.amdhsa_kernel {NAME}')
        R('  .amdhsa_next_free_vgpr 256'); R('  .amdhsa_next_free_sgpr 96'); R('  .amdhsa_accum_offset %d' % (176 if o.agpr else 256))
        R('  .amdhsa_group_segment_fixed_size 0'); R('  .amdhsa_kernarg_size 72'); R('  .amdhsa_user_sgpr_count 2')
        R('  .amdhsa_user_sgpr_kernarg_segment_ptr 1'); R('  .amdhsa_system_sgpr_workgroup_id_x 1'); R('.end_amdhsa_kernel')
        sys.stderr.write(f'sizes: {self.sizes}\n')
        return '\n'.join(self.L) + '\n'

def parse(argv):
    p = argparse.ArgumentParser()
    p.add_argument('-o', default='standalone__batchnorm__sampling.s')
    for k, v in dict(dbg=0, rdspan=48, nodma=0, touch=1, t0=3, prio=0, meta=0, pads=1, pstep=8, unroll_p=0, spinm=20, cyc=0, b0late=20, wmode=1, tl=3, wa=0, swapab=0, order=5, pvalu=0, pspread=0, pskip=0, mrot=0, stouch=0, todd=0, xmulti=0, nostore=0, lazy=1, xsplit=4, xsfrom=4, tw0=3, agpr=0).items():
        p.add_argument('--' + k, type=int, default=v)
    p.add_argument('--spinpt', default='')
    p.add_argument('--early', default='-2:x0a,t0,x0b,w0,t1,t2,w1;-1:x1a,x1b,w2,t3;0:w3,x2a;1:w4,x2b,t4;2:w5,x3a;3:w6,x3b')
    p.add_argument('--d0', type=int, default=2)
    p.add_argument('--xaux', default=''); p.add_argument('--waux', default=''); p.add_argument('--saux', default='nt'); p.add_argument('--saux2', default=''); p.add_argument('--sauxn', type=int, default=3)
    return p.parse_args(argv)

from gen import META
if __name__ == '__main__':
    o = parse(sys.argv[1:])
    s = Gen(o).build()
    if o.meta: s += META.format(name=NAME)
    open(o.o, 'w').write(s)
```

```python
import sys, argparse, subprocess, re

NAME = 'standalone__batchnorm__sampling_kernel'
HEADER = open('standalone__batchnorm__sampling.s.ref').read().split('; Override launch')[0]

XSLOT = 32768; NXS = 3
WBASE = XSLOT*NXS; WSLOT = 16384; NWS = 4
LDS_BYTES = WBASE + WSLOT*NWS
ORS = 176
import os
ORS = int(os.environ.get('ORS', ORS))
PB = 49152
NSTEP = 20
XBYTES = 1024*8*640*2; WBYTES = 3*640*640*2

SETX = [0, 68]; SETW = [32, 100]
V_RAW = 136
V_XA = [160, 161]; V_XB = [162, 163]; V_W = 164
V_OUT = 165; V_PA = 166; V_PW = 167
V_TRC = 168
ACC = 176
E_U = 0; E_E = 20; E_F = 40; E_SC = 52; E_SH = 136; E_C = 64

DOC = """; ---------------------------------------------------------------------------------------------------------------
; ---------------------------------------------------------------------------------------------------------------"""

_size_cache = {}
def isizes(lines):
    todo = []
    def key(l):
        l = l.split(';')[0].strip()
        if not l or l.endswith(':') or l.startswith('.'): return None
        l = re.sub(r'\bL_[A-Za-z0-9_]+', '0', l)
        return l
    for l in lines:
        k = key(l)
        if k is not None and k not in _size_cache and k not in todo: todo.append(k)
    if todo:
        r = subprocess.run(['llvm-mc', '-triple=amdgcn-amd-amdhsa', '-mcpu=gfx950', '-show-encoding'], input='\n'.join(todo) + '\n', capture_output=True, text=True)
        enc = re.findall(r'encoding: \[([^\]]*)\]', r.stdout)
        assert len(enc) == len(todo), (len(enc), len(todo), r.stderr[:2000])
        for k, e in zip(todo, enc): _size_cache[k] = len(e.split(','))
    return [0 if key(l) is None else _size_cache[key(l)] for l in lines]

class Gen:
    def __init__(self, opt):
        self.L = []; self.opt = opt; self.tri = 0; self.uid = 0
    def A(self, s): self.L.append('  ' + s)
    def lab(self, s): self.L.append(s + ':')
    def raw(self, s): self.L.append(s)
    def tr(self, vreg):
        if self.opt.dbg != 2: return
        A = self.A; i = self.tri
        if i > 0:
            A('s_waitcnt lgkmcnt(0)')
            A(f'v_writelane_b32 v{vreg}, s{88 + 2*((i-1)&1)}, {i-1}')
        A(f's_mem{"time" if self.opt.cyc else "realtime"} s[{88 + 2*(i&1)}:{89 + 2*(i&1)}]')
        self.tri += 1
    def tr_end(self, vreg, slot):
        if self.opt.dbg != 2: return
        A = self.A; i = self.tri
        A('s_waitcnt lgkmcnt(0)')
        A(f'v_writelane_b32 v{vreg}, s{88 + 2*((i-1)&1)}, {i-1}')
        A(f'v_writelane_b32 v{vreg}, s60, 63')
        A(f's_cmp_eq_u32 s23, 0'); A(f's_cbranch_scc0 L_trskip{self.uid}')
        A('v_mbcnt_lo_u32_b32 v2, -1, 0'); A('v_mbcnt_hi_u32_b32 v2, -1, v2')
        A(f's_lshl_b32 s44, s2, 9'); A(f's_add_u32 s44, s44, {262144 + slot*256}')
        A('v_lshl_add_u32 v2, v2, 2, s44')
        A(f'global_store_dword v2, v{vreg}, s[62:63]')
        self.lab(f'L_trskip{self.uid}'); self.uid += 1
    def sp(self, name):
        if self.opt.spinpt == name: self.A('s_memrealtime s[92:93]')

    def div10(self, vrow, vpiece, vsrc):
        A = self.A
        A(f'v_mul_u32_u24 v{vrow}, 6554, v{vsrc}')
        A(f'v_lshrrev_b32 v{vrow}, 16, v{vrow}')
        A(f'v_mul_u32_u24 v{vpiece}, 10, v{vrow}')
        A(f'v_sub_u32 v{vpiece}, v{vsrc}, v{vpiece}')

    def entry(self):
        A = self.A; o = self.opt
        A('s_cmp_ge_u32 s2, 256'); A('s_cbranch_scc1 L_exit')
        A('s_load_dwordx16 s[4:19], s[0:1], 0')
        if o.dbg or o.spinpt:
            A('s_memrealtime s[60:61]')
            A('s_load_dwordx2 s[62:63], s[0:1], 64')
        A('v_lshrrev_b32 v1, 6, v0')
        A('v_and_b32 v0, 63, v0')
        A('s_and_b32 s20, s2, 7')
        A('v_readfirstlane_b32 s23, v1')
        A('s_lshr_b32 s25, s2, 3')
        A('s_lshr_b32 s22, s25, 3')
        A('s_and_b32 s21, s25, 7')
        A('s_lshl_b32 s20, s20, 2')
        A('s_add_u32 s20, s20, s22')
        A('s_mul_i32 s26, s20, 327680')
        A('s_mul_i32 s27, s21, 160')
        A('s_cmp_ge_u32 s23, 4')
        A('s_cbranch_scc1 L_cons_sel')
        self.lab('L_producer')

    def touch_setup(self):
        A = self.A; o = self.opt
        A('s_and_b32 s29, s23, 1')
        A('s_and_b32 s28, s23, 2')
        A('s_cmp_eq_u32 s28, 0'); A('s_cbranch_scc0 L_touch_w')
        A('s_lshl_b32 s30, s29, 4')
        if o.xmulti:
            A('v_and_b32 v5, 15, v0'); A('v_add_u32 v3, s30, v5'); A('v_mul_u32_u24 v3, 10240, v3')
            A('v_lshrrev_b32 v5, 4, v0'); A('v_lshl_add_u32 v3, v5, 7, v3')
            A('s_mul_i32 s30, s21, 1280'); A('v_add_u32 v3, s30, v3')
            A(f'v_cmp_gt_u32 vcc, {16*o.xmulti}, v0')
        else:
            A('v_add_u32 v3, s30, v0'); A('v_mul_u32_u24 v3, 10240, v3')
            A('s_mul_i32 s30, s21, 1280'); A('v_add_u32 v3, s30, v3')
            A('v_cmp_gt_u32 vcc, 16, v0')
        A('s_mov_b32 s53, s26'); A('s_movk_i32 s55, 128'); A('s_mov_b32 s58, s34')
        if o.wmode == 2: A('s_mov_b32 s54, -1'); A('v_mov_b32 v19, 0')
        if o.mrot:
            A('s_add_u32 s67, s53, 1280'); A('s_add_u32 s53, s53, s69')
        A('s_waitcnt lgkmcnt(0)')
        A('s_mov_b32 s56, s4'); A('s_and_b32 s57, s5, 0xffff')
        A('s_branch L_touch_j')
        self.lab('L_touch_w')
        self.div10(3, 4, 0)
        if o.wmode == 0:
            A('s_mul_i32 s30, s25, 6'); A('s_mul_i32 s31, s29, 3'); A('s_add_u32 s30, s30, s31')
            A('v_add_u32 v3, s30, v3')
            A('v_lshrrev_b32 v6, 6, v3')
            A('v_and_b32 v3, 63, v3')
            A('v_mul_u32_u24 v3, 1280, v3')
            A('v_lshl_add_u32 v3, v4, 7, v3')
            A('s_mov_b32 s30, 819200'); A('v_mul_lo_u32 v6, v6, s30'); A('v_add_u32 v3, v3, v6')
            A('v_cmp_gt_u32 vcc, 30, v0')
            A('s_mov_b32 s53, 0'); A('s_mov_b32 s55, 81920'); A('s_mov_b32 s58, s38')
        elif o.wmode == 1:
            A('s_lshl_b32 s30, s2, 3'); A('s_lshl_b32 s31, s29, 2'); A('s_add_u32 s30, s30, s31')
            A('v_add_u32 v3, s30, v3')
            A('v_mul_u32_u24 v3, 1280, v3')
            A('v_lshl_add_u32 v3, v4, 7, v3')
            A('v_cmp_gt_u32 vcc, 40, v0')
            first = min(int(e[1:]) for part in o.early.split(';') for e in part.split(':')[1].split(',') if e and e[0] == 't')
            A(f's_mov_b32 s53, {(-first*0x4000000) & 0xffffffff:#x}'); A('s_mov_b32 s55, 0x4000000'); A('s_mov_b32 s58, s38')
        else:
            A('s_lshl_b32 s30, s2, 3'); A('s_lshl_b32 s31, s29, 2'); A('s_add_u32 s30, s30, s31')
            A('v_add_u32 v5, s30, v3')
            A('v_mul_u32_u24 v5, 1280, v5')
            A('v_lshl_add_u32 v5, v4, 7, v5')
            A('v_cmp_gt_u32 vcc, 40, v0'); A('v_mov_b32 v6, 0x40000000'); A('s_nop 0')
            A('v_cndmask_b32 v19, v6, v5, vcc')
            A('s_mul_i32 s30, s25, 6'); A('s_mul_i32 s31, s29, 3'); A('s_add_u32 s30, s30, s31')
            A('v_add_u32 v3, s30, v3')
            A('v_lshrrev_b32 v6, 6, v3')
            A('v_and_b32 v3, 63, v3')
            A('v_mul_u32_u24 v3, 1280, v3')
            A('v_lshl_add_u32 v3, v4, 7, v3')
            A('s_mov_b32 s30, 819200'); A('v_mul_lo_u32 v6, v6, s30'); A('v_add_u32 v3, v3, v6')
            A('v_cmp_gt_u32 vcc, 30, v0')
            A('s_mov_b32 s53, 0x80000000'); A('s_mov_b32 s55, 81920'); A('s_mov_b32 s58, s38'); A('s_mov_b32 s54, 0x7fffffff')
        A('s_waitcnt lgkmcnt(0)')
        A('s_mov_b32 s56, s6'); A('s_and_b32 s57, s7, 0xffff')
        self.lab('L_touch_j')
        A('s_mov_b32 s59, s35')
        A('v_mov_b32 v4, 0x40000000')
        A('v_cndmask_b32 v20, v4, v3, vcc')
        if o.wmode == 2:
            A('s_cmp_eq_u32 s54, -1'); A('s_cselect_b64 vcc, -1, 0'); A('s_cselect_b32 s52, s53, 0')
            A('s_nop 1')
            A('v_cndmask_b32 v19, v19, v20, vcc')

    def producer(self):
        A = self.A; o = self.opt
        A('v_lshrrev_b32 v2, 3, v0')
        A('v_lshrrev_b32 v3, 4, v0')
        A('s_and_b32 s29, s23, 1'); A('s_lshl_b32 s29, s29, 2')
        A('v_add_u32 v3, s29, v3')
        A('v_and_b32 v4, 7, v0')
        A('v_xor_b32 v4, v4, v3')
        A('v_mul_u32_u24 v2, 10240, v2')
        A('v_lshl_add_u32 v10, v4, 4, v2')
        A('s_mul_i32 s46, s23, 81920'); A('s_add_u32 s46, s46, s26')
        A('s_lshl_b32 s41, s23, 10')
        A('s_mov_b32 s51, 98304')
        A('s_mov_b32 s34, %d' % XBYTES); A('s_mov_b32 s35, 0x20000')
        done = set()
        def setup_w():
            if 'w' in done: return
            done.add('w')
            A('v_lshl_add_u32 v7, s23, 6, v0')
            for j in range(4):
                if j: A('v_add_u32 v7, 0x100, v7')
                self.div10(3, 4, 7)
                A('v_bfe_u32 v5, v3, 2, 2'); A('v_lshlrev_b32 v5, 3, v5')
                A('v_bfe_u32 v6, v3, 4, 1'); A('v_lshl_add_u32 v5, v6, 2, v5')
                A('v_and_b32 v6, 3, v3'); A('v_add_u32 v5, v5, v6')
                A('v_mul_u32_u24 v5, 1280, v5')
                A('v_lshl_add_u32 v5, v4, 4, v5')
                A('v_lshrrev_b32 v6, 5, v3')
                A('v_mul_u32_u24 v6, 819200, v6')
                A(f'v_add_u32 v{11+j}, v5, v6')
            A('s_lshl_b32 s42, s23, 10'); A(f's_add_u32 s42, s42, {WBASE}')
            A('s_mov_b32 s47, s27')
            A('s_mov_b32 s43, 0')
            A('s_movk_i32 s48, 0x4000'); A('s_mov_b32 s49, 40960'); A('s_mov_b32 s50, 0xffff')
            A('s_mov_b32 s39, s35')
        def setup_k():
            if 'k' in done: return
            done.add('k')
            A('s_waitcnt lgkmcnt(0)')
            A('s_mov_b32 s32, s4'); A('s_and_b32 s33, s5, 0xffff')
            A('s_mov_b32 s36, s6'); A('s_and_b32 s37, s7, 0xffff')
        def setup_t():
            if 't' in done or not o.touch: return
            done.add('t')
            self.touch_setup()
        A('s_mov_b32 s38, %d' % WBYTES)
        if not o.lazy:
            setup_w(); setup_t(); setup_k()
        if o.stouch:
            A('s_mul_i32 s82, s21, 1280'); A('s_add_u32 s82, s82, s46')
            A('s_add_u32 s80, s4, s82'); A('s_addc_u32 s81, s5, 0')
        sstate = [0]
        def stouch(ch):
            if ch > 9: return
            d = (ch - sstate[0]) * 128; sstate[0] = ch
            if d: A(f's_add_u32 s80, s80, {d}'); A('s_addc_u32 s81, s81, 0')
            for i in range(8):
                if o.stouch == 1: A(f's_load_dword s83, s[80:81], {i*10240}')
                elif o.stouch == 2: A(f's_load_dwordx2 s[84:85], s[80:81], {i*10240 + 60}')
                else:
                    A(f's_load_dword s83, s[80:81], {i*10240}'); A(f's_load_dword s83, s[80:81], {i*10240 + 64}')
        issued = []
        TR = (lambda: self.tr(30)) if not o.stouch else (lambda: None)
        self.tri = 0
        def dma(txt):
            if not o.nodma: A(txt)
        xseq = [0]; wseq = [0]
        def x_half(X, second, wrap=False):
            assert xseq[0] == 2*X + int(second), (xseq, X, second); xseq[0] += 1
            if wrap and o.mrot and not second:
                A('s_cmp_eq_u32 s46, s64'); A('s_cselect_b32 s46, s65, s46')
            n = (8 - o.xsplit) if second else o.xsplit
            if X < o.xsfrom: n = 4
            A('s_mov_b32 m0, s41')
            A('s_addk_i32 s41, %d' % (n*0x1000))
            for i in range(n):
                dma(f'buffer_load_dwordx4 v10, s[32:35], s46 offen {o.xaux} lds')
                issued.append(('x', X))
                if i < n - 1: A('s_addk_i32 m0, 0x1000')
                A('s_addk_i32 s46, %d' % (1280 if not (second and i == n - 1) else 1280 - 10240 + 128))
            if second:
                A('s_sub_u32 s44, s41, s51'); A('s_cselect_b32 s41, s41, s44')
        def w_step(t, wrap=False):
            assert wseq[0] == t, (wseq, t); wseq[0] += 1
            if wrap and o.mrot:
                A('s_cmp_eq_u32 s47, s66'); A('s_cselect_b32 s47, s27, s47')
            A('s_add_u32 m0, s42, s43')
            A('s_add_u32 s43, s43, s48')
            for j in range(4):
                dma(f'buffer_load_dwordx4 v{11+j}, s[36:39], s47 offen {o.waux} lds')
                issued.append(('w', t))
                if j < 3:
                    A('s_addk_i32 m0, 0x1000')
                    A('s_and_b32 s43, s43, s50' if j == 0 else 's_nop 0')
            A('s_add_u32 s47, s47, s49')
        tstate = [0]; tfirst = [0, 0, 0]
        def touch(ch, wrap=False):
            if not o.touch: return
            if ch > 9 and (o.dbg == 2 or o.unroll_p): return
            for _ in range(ch - tstate[0]): A('s_add_u32 s53, s53, s55')
            if wrap and o.mrot:
                A('s_cmp_eq_u32 s53, s67'); A('s_cselect_b32 s53, s26, s53')
            tstate[0] = ch
            if o.wmode == 2 and not tfirst[0]:
                tfirst[0] = 1
                if ch: A(f's_cmp_eq_u32 s54, -1'); A('s_cselect_b32 s52, s53, 0')
                A(f'buffer_load_dword v21, v19, s[56:59], s52 offen')
            else:
                if o.wmode == 2 and ch >= o.tw0 and not tfirst[1]:
                    tfirst[1] = 1; A('s_and_b32 s53, s53, s54')
                if o.wmode == 2 and ch > o.tw1 and not tfirst[2]:
                    tfirst[2] = 1; A('s_not_b32 s70, s54'); A('s_or_b32 s53, s53, s70')
                A(f'buffer_load_dword v21, v20, s[56:59], s53 offen')
            issued.append(('t', ch))
        def need(step):
            req = [i for i, tg in enumerate(issued) if tg == ('x', step >> 1) or tg == ('w', step)]
            return len(issued) - 1 - max(req)
        def dummyh(frac):
            n = 20 // frac
            for i in range(0, n, 2): A(f'v_pk_fma_f32 v[{70+i}:{71+i}], v[{100+i}:{101+i}], v[{120}:{121}], v[{122}:{123}]')
            for i in range(n): A(f'v_exp_f32 v{130+i}, v{70+i}')
            for i in range(0, n, 2): A(f'v_pk_fma_f32 v[{130+i}:{131+i}], v[{130+i}:{131+i}], v[{120}:{121}], v[{120}:{121}]')
            for i in range(n): A(f'v_rcp_f32 v{130+i}, v{130+i}')
            for i in range(0, n, 2): A(f'v_pk_mul_f32 v[{70+i}:{71+i}], v[{70+i}:{71+i}], v[{130+i}:{131+i}]')
            for i in range(0, n, 2): A(f'v_cvt_pk_bf16_f32 v{150+i//2}, v{70+i}, v{71+i}')
        def sync(t):
            if o.pspread and t >= 19 - o.pspread * o.pskip: dummyh(o.pspread)
            TR()
            n = need(t + 2) if t + 2 < NSTEP else None
            if n is not None: A(f's_waitcnt vmcnt({n})')
            TR()
            A('s_barrier')
            return n
        TR()
        def do(item):
            if item[0] == 't': setup_t()
            if item[0] == 'w': setup_w()
            setup_k()
            if item[0] == 'z':
                setup_w(); return
            if item[0] == 'y':
                A('s_waitcnt vmcnt(0)'); A('s_barrier'); return
            if item[0] == 'w': w_step(int(item[1:]))
            elif item[0] == 'x': x_half(int(item[1:-1]), item[-1] == 'b')
            elif item[0] == 't': touch(int(item[1:]))
            elif item[0] == 's': stouch(int(item[1:]))
        early = {}
        for part in o.early.split(';'):
            k, v = part.split(':'); early[int(k)] = [e for e in v.split(',') if e]
        for it in range(-2, 2*o.d0):
            for e in early.get(it, []): do(e)
            if it == -2: self.store_addr()
            sync(it)
        if o.dbg == 2 or o.unroll_p:
            for D in range(o.d0, 7):
                w_step(2*D + 3 + o.wa, True); x_half(D + 2, 0, True)
                if not o.todd and o.tl and not o.tc: (stouch(D + o.tl) if o.stouch else touch(D + o.tl, True))
                for e in early.get(2*D, []): do(e)
                sync(2*D)
                w_step(2*D + 4 + o.wa, True); x_half(D + 2, 1, True)
                if o.todd: touch(D + o.tl, True)
                sync(2*D + 1)
        else:
            A(f's_movk_i32 s45, {7 - o.d0}')
            self.lab('L_ploop')
            mark = len(self.L); ns = []
            for D in range(o.d0, 7):
                if D == o.d0 + 1: body_end = len(self.L)
                w_step(2*D + 3 + o.wa, True); x_half(D + 2, 0, True)
                if not o.todd and o.tl and not o.tc: touch(D + o.tl, True)
                a = sync(2*D)
                w_step(2*D + 4 + o.wa, True); x_half(D + 2, 1, True)
                if o.todd: touch(D + o.tl, True)
                b = sync(2*D + 1)
                ns.append((a, b))
            if len(set(ns)) != 1:
                mn = (min(a for a, b in ns), min(b for a, b in ns))
                sys.stderr.write(f'loop vmcnt variants {ns} -> {mn}\n')
            body = self.L[mark:body_end]
            mn = (min(a for a, b in ns), min(b for a, b in ns))
            it = iter(mn)
            body = [f'  s_waitcnt vmcnt({next(it)})' if l.strip().startswith('s_waitcnt vmcnt') else l for l in body]
            self.L = self.L[:mark] + body
            A('s_sub_u32 s45, s45, 1'); A('s_cmp_lg_u32 s45, 0'); A('s_cbranch_scc1 L_ploop')
        w_step(17 + o.wa); x_half(9, 0); sync(14)
        w_step(18 + o.wa); x_half(9, 1); sync(15)
        if not o.wa: w_step(19)
        def dummy(nph):
            for _ in range(nph):
                for i in range(0, 20, 2): A(f'v_pk_fma_f32 v[{70+i}:{71+i}], v[{100+i}:{101+i}], v[{120}:{121}], v[{122}:{123}]')
                for i in range(20): A(f'v_exp_f32 v{130+i}, v{70+i}')
                for i in range(0, 20, 2): A(f'v_pk_fma_f32 v[{130+i}:{131+i}], v[{130+i}:{131+i}], v[{120}:{121}], v[{120}:{121}]')
                for i in range(20): A(f'v_rcp_f32 v{130+i}, v{130+i}')
                for i in range(0, 20, 2): A(f'v_pk_mul_f32 v[{70+i}:{71+i}], v[{70+i}:{71+i}], v[{130+i}:{131+i}]')
                for i in range(0, 20, 2): A(f'v_cvt_pk_bf16_f32 v{150+i//2}, v{70+i}, v{71+i}')
        if o.pvalu >= 1: dummy(1)
        sync(16)
        if o.pvalu >= 2: dummy(1)
        sync(17)
        if o.pvalu >= 3: dummy(1)
        sync(18)
        if o.stouch: A('s_waitcnt lgkmcnt(0)')
        phases = self.phases()
        nrow = 0
        for ph, rows in enumerate(phases):
            A('s_barrier')
            aux = o.saux if ph < len(phases) - o.plain else o.saux2
            for s_ in rows:
                D = 40 + 8*(nrow % 4); nrow += 1
                for j in range(2): A(f'ds_read_b128 v[{D+4*j}:{D+4*j+3}], v{22+j} offset:{s_*32*ORS}')
                A('s_waitcnt lgkmcnt(0)')
                for j in range(2 if not o.nostore else 0):
                    off = (s_ % 4)*1280
                    A(f'buffer_store_dwordx4 v[{D+4*j}:{D+4*j+3}], v{26+j}, s[72:75], s{76 + (s_ >> 2)} offen {("offset:%d" % off) if off else ""} {aux}')
        if o.dbg == 2 and not o.stouch:
            A('s_waitcnt vmcnt(0)'); TR(); self.tr_end(30, 1)
        self.lab('L_exit')
        A('s_endpgm')

    def store_addr(self):
        A = self.A
        A('s_mov_b32 s72, s16'); A('s_and_b32 s73, s17, 0xffff'); A('s_mov_b32 s74, s34'); A('s_mov_b32 s75, s35')
        A('s_add_u32 s76, s26, s27'); A('s_add_u32 s77, s76, 5120')
        A(f's_mul_i32 s78, s23, {8*ORS}'); A('s_mul_i32 s79, s23, 81920')
        for j in range(2):
            A(f'v_add_u32 v3, {64*j}, v0')
            if j == 1: A('v_min_u32 v3, 79, v3')
            self.div10(4, 5, 3)
            A(f'v_mul_u32_u24 v6, {ORS}, v4')
            A(f'v_lshl_add_u32 v6, v5, 4, v6')
            A(f'v_add_u32 v{22+j}, s78, v6')
            A(f'v_mul_u32_u24 v6, 10240, v4')
            A(f'v_lshl_add_u32 v6, v5, 4, v6')
            A(f'v_add_u32 v{26+j}, s79, v6')
        A('v_cmp_gt_u32 vcc, 16, v0')
        A('v_mov_b32 v7, 0x40000000')
        A('s_nop 0')
        A('v_cndmask_b32 v27, v7, v27, vcc')

    def phases(self):
        return [[int(x) for x in p.split(',')] for p in self.opt.phases.split('|')]

    def mfma_list(self, hi):
        out = []
        for s_in in range(8):
            for k in range(3):
                s_out = s_in + 1 - k
                if not 0 <= s_out < 8: continue
                out.append((s_out, (k, 0), s_in))
                out.append((8 + s_out, (k, 1), s_in))
                if (not hi and s_out < 4): out.append((16 + s_out, (k, 2), s_in))
                if (hi and s_out >= 4): out.append((16 + s_out - 4, (k, 2), s_in))
        assert len(out) == 55
        od = self.opt.order
        sval = lambda b: (b % 8) if b < 16 else (b - 16 + (4 if hi else 0))
        if od == 2: out.sort(key=lambda e: (e[0], e[1][0]))
        elif od == 3: out.sort(key=lambda e: (sval(e[0]), e[1][1], e[1][0]))
        elif od == 5: out.sort(key=lambda e: (e[0], -e[1][0]) if e[0] % 2 else (e[0], e[1][0]))
        elif od == 6: out.sort(key=lambda e: (e[1][1], sval(e[0]), e[1][0] if sval(e[0]) % 2 == 0 else -e[1][0]))
        return out
    def ncols(self, hi): return [3, 4, 2] if hi else [0, 1, 2]
    def reads(self, step, hi):
        st = step & 1
        xs = (step >> 1) % NXS; kk = step & 1; ws = step % NWS
        nc = self.ncols(hi)
        xr = []
        for s in range(8):
            va = (V_XA if xs < 2 else V_XB)[kk]
            off = (xs*XSLOT if xs < 2 else 0) + s*4096
            d = SETX[st] + 4*s
            xr.append(f'ds_read_b128 v[{d}:{d+3}], v{va} offset:{off}')
        wr = []
        for k in range(3):
            for g in range(3):
                for u in range(2):
                    d = SETW[st] + (k*3 + g)*4 + 2*u
                    off = ws*WSLOT + k*5120 + u*2560 + nc[g]*32
                    wr.append(f'ds_read_b64_tr_b16 v[{d}:{d+1}], v{V_W} offset:{off}')
        r = []
        while xr or wr:
            if wr: r.append(wr.pop(0))
            if wr: r.append(wr.pop(0))
            if xr: r.append(xr.pop(0))
        return r
    def params_code(self):
        M, V, G, B = V_RAW, V_RAW+1, V_RAW+2, V_RAW+3
        c = ['s_waitcnt vmcnt(0)']
        for r in (M, V, G, B): c.append(f'v_lshlrev_b32 v{r}, 16, v{r}')
        c += [f'v_add_f32 v{V}, 0x3727c5ac, v{V}', f'v_rsq_f32 v{V}, v{V}', f'v_mul_f32 v{G}, 0xbfb8aa3b, v{G}',
              f'v_mul_f32 v{B}, 0xbfb8aa3b, v{B}', f'v_mul_f32 v{V_RAW+4}, v{G}, v{V}', f'v_fma_f32 v{V_RAW+5}, -v{M}, v{V_RAW+4}, v{B}']
        return c

    def consumer(self, hi):
        A = self.A; o = self.opt
        tag = 'hi' if hi else 'lo'
        start = len(self.L)
        self.lab(f'L_cons_{tag}')
        nc = self.ncols(hi)
        A('s_lshr_b32 s28, s23, 1')
        A('v_and_b32 v1, 15, v0')
        A('v_lshrrev_b32 v2, 4, v0')
        A('v_lshrrev_b32 v3, 1, v1')
        A('v_xor_b32 v3, v3, v2')
        A('v_lshlrev_b32 v3, 4, v3')
        A('v_lshl_add_u32 v3, v1, 7, v3')
        A('s_lshl_b32 s29, s28, 11')
        A(f'v_add_u32 v{V_XA[0]}, s29, v3')
        A(f'v_xor_b32 v{V_XA[1]}, 64, v{V_XA[0]}')
        A(f'v_add_u32 v{V_XB[0]}, 0x10000, v{V_XA[0]}')
        A(f'v_add_u32 v{V_XB[1]}, 0x10000, v{V_XA[1]}')
        A('v_lshrrev_b32 v3, 2, v1')
        A('v_lshl_add_u32 v3, v2, 2, v3')
        A('v_mul_u32_u24 v3, 160, v3')
        A('v_and_b32 v4, 3, v1')
        A('v_lshl_add_u32 v3, v4, 3, v3')
        A(f'v_add_u32 v{V_W}, {WBASE}, v3')
        A('s_lshl_b32 s29, s28, 4')
        A('v_add_u32 v3, s29, v1')
        A(f'v_mul_u32_u24 v3, {ORS}, v3')
        A(f'v_lshl_add_u32 v{V_OUT}, v2, 3, v3')
        A(f'v_lshlrev_b32 v3, 4, v2'); A(f'v_add_u32 v{V_PA}, {PB}, v3')
        A('v_min_u32 v3, 19, v0'); A('s_mul_i32 s29, s23, 20'); A('v_add_u32 v3, s29, v3')
        A(f'v_lshlrev_b32 v4, 2, v3'); A(f'v_add_u32 v{V_PW}, {PB}, v4')
        tcs = {}
        if o.tc:
            for e in o.tcs.split(','):
                p_, c_ = e.split(':'); tcs.setdefault(p_, []).append(int(c_))
            A('s_lshl_b32 s29, s23, 3'); A('v_add_u32 v3, s29, v0'); A('v_mul_u32_u24 v3, 10240, v3')
            A('s_mul_i32 s29, s21, 1280'); A('v_add_u32 v3, s29, v3')
            A('v_cmp_gt_u32 vcc, 8, v0'); A('v_mov_b32 v4, 0x40000000')
            A('s_mov_b32 s40, s4'); A('s_and_b32 s41, s5, 0xffff'); A(f's_mov_b32 s42, {XBYTES}'); A('s_mov_b32 s43, 0x20000')
            A('v_cndmask_b32 v169, v4, v3, vcc')
            A('s_mov_b32 s44, s26')
        cpos = [0]; nissued = [0]
        def ct(ch):
            r = []
            d = (ch - cpos[0]) * 128; cpos[0] = ch
            if d: r.append(f's_addk_i32 s44, {d}')
            r.append('buffer_load_dword v170, v169, s[40:43], s44 offen')
            nissued[0] += 1
            return r
        for ch in tcs.get('S', []):
            for ins in ct(ch): A(ins)
        if o.pads:
            A('s_cmp_eq_u32 s28, 0'); A(f's_cbranch_scc1 L_pad_{tag}_1')
            A('s_cmp_eq_u32 s28, 1'); A(f's_branch L_pad_{tag}_3')
            self.lab(f'L_warm_{tag}')
        if o.prio: A(f's_setprio {o.prio}')
        A('s_cmp_lg_u32 s2, s2')
        TR = lambda: self.tr(V_TRC)
        self.tri = 0
        if ',y' in o.early: A('s_barrier')
        TR()
        A('s_barrier')
        TR(); self.sp('Bm1')
        for ch in tcs.get('M', []):
            for ins in ct(ch): A(ins)
            A('s_cmp_lg_u32 s2, s2')
        for r in self.reads(0, hi): A(r)
        A('s_waitcnt lgkmcnt(0)')
        if not o.b0late:
            A('s_barrier')
            TR(); self.sp('B0')
        ml = self.mfma_list(hi)
        for t in range(NSTEP):
            st = t & 1
            self.raw(f'; step {t}')
            fill = self.reads(t + 1, hi) if t + 1 < NSTEP else []
            span = o.rdspan
            extra = {}
            nbefore = nissued[0]
            for ch in tcs.get(str(t), []):
                extra.setdefault(o.tcpos, []).extend(ct(ch) + ['s_cmp_lg_u32 s2, s2'])
            if t == o.pstep:
                pc = self.params_code()
                pc[0] = f's_waitcnt vmcnt({nbefore})'
                for i, ins in enumerate(pc): extra.setdefault(1 + 4*i, []).append(ins)
            if t == 17:
                extra.setdefault(50, []).append(f'ds_write_b32 v{V_PW}, v{V_RAW+4}')
                extra.setdefault(51, []).append(f'ds_write_b32 v{V_PW}, v{V_RAW+5} offset:320')
            if t == NSTEP - 1:
                fill = []
                for g in range(3):
                    fill.append(f'ds_read_b128 v[{E_SC+4*g}:{E_SC+4*g+3}], v{V_PA} offset:{nc[g]*64}')
                    fill.append(f'ds_read_b128 v[{E_SH+4*g}:{E_SH+4*g+3}], v{V_PA} offset:{320 + nc[g]*64}')
                fill += [f'v_mov_b32 v{E_C}, 0xbfb8aa3b', f'v_mov_b32 v{E_C+1}, 0xbfb8aa3b']
                span = 30
            seen = set(); ri = 0
            for mi, (blk, (k, g), s_in) in enumerate(ml):
                a = ACC + 4*blk
                w = SETW[st] + (k*3 + g)*4; x = SETX[st] + 4*s_in
                c = f'v[{a}:{a+3}]'
                if t == 0 and blk not in seen: c = '0'
                seen.add(blk)
                if o.agpr:
                    aa = 4*blk
                    cc = '0' if c == '0' else f'a[{aa}:{aa+3}]'
                    A(f'v_mfma_f32_16x16x32_bf16 a[{aa}:{aa+3}], v[{w}:{w+3}], v[{x}:{x+3}], {cc}')
                    due = 0
                    if t == 0 and o.b0late:
                        if mi == o.b0late - 1:
                            A('s_barrier'); TR(); self.sp('B0')
                        due = max(0, mi + 1 - o.b0late) * len(fill) // (50 - o.b0late)
                    else:
                        due = (mi + 1) * len(fill) // span if fill else 0
                    while ri < min(due, len(fill)):
                        A(fill[ri]); ri += 1
                    for ins in extra.get(mi, []): A(ins)
                    continue
                if o.swapab: A(f'v_mfma_f32_16x16x32_bf16 v[{a}:{a+3}], v[{x}:{x+3}], v[{w}:{w+3}], {c}')
                else: A(f'v_mfma_f32_16x16x32_bf16 v[{a}:{a+3}], v[{w}:{w+3}], v[{x}:{x+3}], {c}')
                if t == 0 and o.b0late:
                    if mi == o.b0late - 1:
                        A('s_barrier'); TR(); self.sp('B0')
                    due = max(0, mi + 1 - o.b0late) * len(fill) // (50 - o.b0late)
                else:
                    due = (mi + 1) * len(fill) // span if fill else 0
                while ri < min(due, len(fill)):
                    A(fill[ri]); ri += 1
                for ins in extra.get(mi, []): A(ins)
            assert ri == len(fill)
            if t + 1 < NSTEP:
                A('s_waitcnt lgkmcnt(0)')
                A('s_barrier')
                TR(); self.sp(f'B{t+1}')
        TR(); self.sp('lend')
        A('s_waitcnt lgkmcnt(0)')
        A('s_nop 6')
        phases = self.phases()
        def blocks_of(s_, h_):
            r = []
            for g in range(3):
                if g == 2 and ((s_ >= 4) != h_): continue
                r.append(((g*8 + s_) if g < 2 else 16 + (s_ - 4 if h_ else s_), g, s_))
            return r
        seq = [b for rows in phases for s_ in rows for b in blocks_of(s_, hi)]
        cum = []; lo_c = hi_c = 0
        for rows in phases:
            lo_c += sum(len(blocks_of(s_, False)) for s_ in rows); hi_c += sum(len(blocks_of(s_, True)) for s_ in rows)
            cum.append(max(lo_c, hi_c))
        prev = 0
        for ph, c_ in enumerate(cum):
            blks = seq[prev:c_]; prev = c_
            n = 4*len(blks)
            assert n <= 20
            for bi, (blk, g, s) in enumerate(blks):
                a = ACC + 4*blk; U = E_U + 4*bi; sc = E_SC + 4*g; sh = E_SH + 4*g
                for p in (0, 2): A(f'v_pk_fma_f32 v[{U+p}:{U+p+1}], v[{a+p}:{a+p+1}], v[{sc+p}:{sc+p+1}], v[{sh+p}:{sh+p+1}]')
            for i in range(n): A(f'v_exp_f32 v{E_E+i}, v{E_U+i}')
            if ph > 0:
                A('s_waitcnt lgkmcnt(0)'); A('s_barrier'); TR()
            for i in range(0, n, 2): A(f'v_pk_fma_f32 v[{E_E+i}:{E_E+i+1}], v[{E_E+i}:{E_E+i+1}], v[{E_C}:{E_C+1}], v[{E_C}:{E_C+1}]')
            for i in range(n): A(f'v_rcp_f32 v{E_E+i}, v{E_E+i}')
            for i in range(0, n, 2): A(f'v_pk_mul_f32 v[{E_U+i}:{E_U+i+1}], v[{E_U+i}:{E_U+i+1}], v[{E_E+i}:{E_E+i+1}]')
            for bi, (blk, g, s) in enumerate(blks):
                U = E_U + 4*bi; F = E_F + 2*bi
                A(f'v_cvt_pk_bf16_f32 v{F}, v{U}, v{U+1}')
                A(f'v_cvt_pk_bf16_f32 v{F+1}, v{U+2}, v{U+3}')
                A(f'ds_write_b64 v{V_OUT}, v[{F}:{F+1}] offset:{s*32*ORS + nc[g]*32}')
        A('s_waitcnt lgkmcnt(0)'); A('s_barrier'); TR()
        self.tr_end(V_TRC, 0)
        self.sp('E3')
        if o.spinpt:
            A('s_cmp_eq_u32 s2, 0'); A(f's_cbranch_scc0 L_end_{tag}')
            A('s_cmp_eq_u32 s23, 0'); A(f's_cbranch_scc0 L_end_{tag}')
            A('s_waitcnt lgkmcnt(0)')
            A('s_sub_u32 s44, s92, s60'); A(f's_mul_i32 s44, s44, {o.spinm}')
            self.lab(f'L_spin_{tag}')
            A('s_memrealtime s[66:67]'); A('s_waitcnt lgkmcnt(0)')
            A('s_sub_u32 s45, s66, s60'); A('s_cmp_lt_u32 s45, s44'); A(f's_cbranch_scc1 L_spin_{tag}')
        self.lab(f'L_end_{tag}')
        A('s_endpgm')
        body = self.L[start:]
        sizes = isizes(body)
        out = []; off = 0; page = 1
        total = sum(sizes)
        npages = (total + 4*8 + 4095) // 4096
        for l, sz in zip(body, sizes):
            if o.pads and off >= page*4096 and sz and page <= 3:
                nxt = f'L_pad_{tag}_2' if page == 1 else f'L_warm_{tag}'
                out.append(f'L_pad_{tag}_{page}:'); out.append(f'  s_cbranch_scc1 {nxt}')
                off += 4; page += 1
            out.append(l); off += sz
        if o.pads:
            assert page == 4, f'expected 4 pages, got {page} (size {off})'
            assert off <= 4*4096 + (4096 if o.dbg or o.spinpt else 0), off
        self.L = self.L[:start] + out
        self.sizes[tag] = off

    def build(self):
        o = self.opt; R = self.raw
        self.sizes = {}
        R(HEADER.rstrip('\n'))
        R(f'; @launch grid=(256,1,1) block=(512,1,1) lds={LDS_BYTES}')
        R(DOC)
        R('.amdgcn_target "amdgcn-amd-amdhsa--gfx950"'); R('.text'); R(f'.globl {NAME}'); R('.p2align 8'); R(f'.type {NAME},@function')
        self.lab(NAME)
        s0 = len(self.L)
        self.entry()
        self.producer()
        A = self.A
        self.lab('L_cons_sel')
        A('s_sub_u32 s23, s23, 4')
        A('v_min_u32 v3, 19, v0'); A('s_mul_i32 s29, s23, 20'); A('v_add_u32 v3, s29, v3')
        A('v_lshlrev_b32 v3, 1, v3'); A('v_add_u32 v3, s27, v3')
        A('s_waitcnt lgkmcnt(0)')
        for i, sp in enumerate([8, 10, 12, 14]):
            A(f'global_load_ushort v{V_RAW+i}, v3, s[{sp}:{sp+1}]')
        A('s_bitcmp1_b32 s23, 0'); A('s_cbranch_scc1 L_cons_hi'); A('s_branch L_cons_lo')
        self.sizes['prod'] = sum(isizes(self.L[s0:]))
        R('.p2align 12')
        self.consumer(False)
        R('.p2align 12')
        self.consumer(True)
        R('.section .rodata,"a"'); R('.p2align 6'); R(f'.amdhsa_kernel {NAME}')
        R('  .amdhsa_next_free_vgpr 256'); R('  .amdhsa_next_free_sgpr 96'); R('  .amdhsa_accum_offset %d' % (176 if o.agpr else 256))
        R('  .amdhsa_group_segment_fixed_size 0'); R('  .amdhsa_kernarg_size 72'); R('  .amdhsa_user_sgpr_count 2')
        R('  .amdhsa_user_sgpr_kernarg_segment_ptr 1'); R('  .amdhsa_system_sgpr_workgroup_id_x 1'); R('.end_amdhsa_kernel')
        sys.stderr.write(f'sizes: {self.sizes}\n')
        return '\n'.join(self.L) + '\n'

def parse(argv):
    p = argparse.ArgumentParser()
    p.add_argument('-o', default='standalone__batchnorm__sampling.s')
    for k, v in dict(dbg=0, rdspan=48, nodma=0, touch=1, t0=3, prio=0, meta=0, pads=1, pstep=8, unroll_p=0, spinm=20, cyc=0, b0late=20, wmode=1, tl=3, wa=0, swapab=0, order=5, pvalu=0, pspread=0, pskip=0, mrot=0, stouch=0, todd=0, xmulti=0, nostore=0, lazy=1, xsplit=4, xsfrom=4, tw0=3, tw1=99, agpr=0, tc=0, tcpos=50).items():
        p.add_argument('--' + k, type=int, default=v)
    p.add_argument('--spinpt', default='')
    p.add_argument('--phases', default='0,4|1,5|2,6|3,7'); p.add_argument('--plain', type=int, default=1)
    p.add_argument('--tcs', default='S:1,S:2,M:3,1:4,4:5,6:6,8:7,10:8,12:9')
    p.add_argument('--early', default='-2:x0a,t0,x0b,w0,t1,t2,w1;-1:x1a,x1b,w2,t3;0:w3,x2a;1:w4,x2b,t4;2:w5,x3a;3:w6,x3b')
    p.add_argument('--d0', type=int, default=2)
    p.add_argument('--xaux', default=''); p.add_argument('--waux', default=''); p.add_argument('--saux', default='nt'); p.add_argument('--saux2', default=''); p.add_argument('--sauxn', type=int, default=3)
    return p.parse_args(argv)

from gen import META
if __name__ == '__main__':
    o = parse(sys.argv[1:])
    s = Gen(o).build()
    if o.meta: s += META.format(name=NAME)
    open(o.o, 'w').write(s)
```

```python
import sys, argparse, subprocess, re

NAME = 'standalone__batchnorm__sampling_kernel'
HEADER = open('standalone__batchnorm__sampling.s.ref').read().split('; Override launch')[0]

XSLOT = 32768; NXS = 3
WBASE = XSLOT*NXS; WSLOT = 16384; NWS = 4
LDS_BYTES = WBASE + WSLOT*NWS
ORS = 176
import os
ORS = int(os.environ.get('ORS', ORS))
PB = 49152
NSTEP = 20
XBYTES = 1024*8*640*2; WBYTES = 3*640*640*2

SETX = [0, 68]; SETW = [32, 100]
V_RAW = 136
V_XA = [160, 161]; V_XB = [162, 163]; V_W = 164
V_OUT = 165; V_PA = 166; V_PW = 167
V_TRC = 168
ACC = 176
E_U = 0; E_E = 20; E_F = 40; E_SC = 52; E_SH = 136; E_C = 64

DOC = """; ---------------------------------------------------------------------------------------------------------------
; ---------------------------------------------------------------------------------------------------------------"""

_size_cache = {}
def isizes(lines):
    todo = []
    def key(l):
        l = l.split(';')[0].strip()
        if not l or l.endswith(':') or l.startswith('.'): return None
        l = re.sub(r'\bL_[A-Za-z0-9_]+', '0', l)
        return l
    for l in lines:
        k = key(l)
        if k is not None and k not in _size_cache and k not in todo: todo.append(k)
    if todo:
        r = subprocess.run(['llvm-mc', '-triple=amdgcn-amd-amdhsa', '-mcpu=gfx950', '-show-encoding'], input='\n'.join(todo) + '\n', capture_output=True, text=True)
        enc = re.findall(r'encoding: \[([^\]]*)\]', r.stdout)
        assert len(enc) == len(todo), (len(enc), len(todo), r.stderr[:2000])
        for k, e in zip(todo, enc): _size_cache[k] = len(e.split(','))
    return [0 if key(l) is None else _size_cache[key(l)] for l in lines]

class Gen:
    def __init__(self, opt):
        self.L = []; self.opt = opt; self.tri = 0; self.uid = 0
    def A(self, s): self.L.append('  ' + s)
    def lab(self, s): self.L.append(s + ':')
    def raw(self, s): self.L.append(s)
    def tr(self, vreg):
        if self.opt.dbg != 2: return
        A = self.A; i = self.tri
        if i > 0:
            A('s_waitcnt lgkmcnt(0)')
            A(f'v_writelane_b32 v{vreg}, s{88 + 2*((i-1)&1)}, {i-1}')
        A(f's_mem{"time" if self.opt.cyc else "realtime"} s[{88 + 2*(i&1)}:{89 + 2*(i&1)}]')
        self.tri += 1
    def tr_end(self, vreg, slot):
        if self.opt.dbg != 2: return
        A = self.A; i = self.tri
        A('s_waitcnt lgkmcnt(0)')
        A(f'v_writelane_b32 v{vreg}, s{88 + 2*((i-1)&1)}, {i-1}')
        A(f'v_writelane_b32 v{vreg}, s60, 63')
        A(f's_cmp_eq_u32 s23, 0'); A(f's_cbranch_scc0 L_trskip{self.uid}')
        A('v_mbcnt_lo_u32_b32 v2, -1, 0'); A('v_mbcnt_hi_u32_b32 v2, -1, v2')
        A(f's_lshl_b32 s44, s2, 9'); A(f's_add_u32 s44, s44, {262144 + slot*256}')
        A('v_lshl_add_u32 v2, v2, 2, s44')
        A(f'global_store_dword v2, v{vreg}, s[62:63]')
        self.lab(f'L_trskip{self.uid}'); self.uid += 1
    def sp(self, name):
        if self.opt.spinpt == name: self.A('s_memrealtime s[92:93]')

    def div10(self, vrow, vpiece, vsrc):
        A = self.A
        A(f'v_mul_u32_u24 v{vrow}, 6554, v{vsrc}')
        A(f'v_lshrrev_b32 v{vrow}, 16, v{vrow}')
        A(f'v_mul_u32_u24 v{vpiece}, 10, v{vrow}')
        A(f'v_sub_u32 v{vpiece}, v{vsrc}, v{vpiece}')

    def entry(self):
        A = self.A; o = self.opt
        A('s_cmp_ge_u32 s2, 256'); A('s_cbranch_scc1 L_exit')
        A('s_load_dwordx16 s[4:19], s[0:1], 0')
        if o.dbg or o.spinpt:
            A('s_memrealtime s[60:61]')
            A('s_load_dwordx2 s[62:63], s[0:1], 64')
        A('v_lshrrev_b32 v1, 6, v0')
        A('v_and_b32 v0, 63, v0')
        A('s_and_b32 s20, s2, 7')
        A('v_readfirstlane_b32 s23, v1')
        A('s_lshr_b32 s25, s2, 3')
        A('s_lshr_b32 s22, s25, 3')
        A('s_and_b32 s21, s25, 7')
        A('s_lshl_b32 s20, s20, 2')
        A('s_add_u32 s20, s20, s22')
        A('s_mul_i32 s26, s20, 327680')
        A('s_mul_i32 s27, s21, 160')
        A('s_cmp_ge_u32 s23, 4')
        A('s_cbranch_scc1 L_cons_sel')
        self.lab('L_producer')

    def touch_setup(self):
        A = self.A; o = self.opt
        A('s_and_b32 s29, s23, 1')
        A('s_and_b32 s28, s23, 2')
        A('s_cmp_eq_u32 s28, 0'); A('s_cbranch_scc0 L_touch_w')
        A('s_lshl_b32 s30, s29, 4')
        if o.xmulti:
            A('v_and_b32 v5, 15, v0'); A('v_add_u32 v3, s30, v5'); A('v_mul_u32_u24 v3, 10240, v3')
            A('v_lshrrev_b32 v5, 4, v0'); A('v_lshl_add_u32 v3, v5, 7, v3')
            A('s_mul_i32 s30, s21, 1280'); A('v_add_u32 v3, s30, v3')
            A(f'v_cmp_gt_u32 vcc, {16*o.xmulti}, v0')
        else:
            A('v_add_u32 v3, s30, v0'); A('v_mul_u32_u24 v3, 10240, v3')
            A('s_mul_i32 s30, s21, 1280'); A('v_add_u32 v3, s30, v3')
            A('v_cmp_gt_u32 vcc, 16, v0')
        A('s_mov_b32 s53, s26'); A('s_movk_i32 s55, 128'); A('s_mov_b32 s58, s34')
        if o.wmode == 2: A('s_mov_b32 s54, -1'); A('v_mov_b32 v19, 0')
        if o.mrot:
            A('s_add_u32 s67, s53, 1280'); A('s_add_u32 s53, s53, s69')
        A('s_waitcnt lgkmcnt(0)')
        A('s_mov_b32 s56, s4'); A('s_and_b32 s57, s5, 0xffff')
        A('s_branch L_touch_j')
        self.lab('L_touch_w')
        self.div10(3, 4, 0)
        if o.wmode == 0:
            A('s_mul_i32 s30, s25, 6'); A('s_mul_i32 s31, s29, 3'); A('s_add_u32 s30, s30, s31')
            A('v_add_u32 v3, s30, v3')
            A('v_lshrrev_b32 v6, 6, v3')
            A('v_and_b32 v3, 63, v3')
            A('v_mul_u32_u24 v3, 1280, v3')
            A('v_lshl_add_u32 v3, v4, 7, v3')
            A('s_mov_b32 s30, 819200'); A('v_mul_lo_u32 v6, v6, s30'); A('v_add_u32 v3, v3, v6')
            A('v_cmp_gt_u32 vcc, 30, v0')
            A('s_mov_b32 s53, 0'); A('s_mov_b32 s55, 81920'); A('s_mov_b32 s58, s38')
        elif o.wmode == 1:
            A('s_lshl_b32 s30, s2, 3'); A('s_lshl_b32 s31, s29, 2'); A('s_add_u32 s30, s30, s31')
            A('v_add_u32 v3, s30, v3')
            A('v_mul_u32_u24 v3, 1280, v3')
            A('v_lshl_add_u32 v3, v4, 7, v3')
            A('v_cmp_gt_u32 vcc, 40, v0')
            first = min(int(e[1:]) for part in o.early.split(';') for e in part.split(':')[1].split(',') if e and e[0] == 't')
            A(f's_mov_b32 s53, {(-first*0x4000000) & 0xffffffff:#x}'); A('s_mov_b32 s55, 0x4000000'); A('s_mov_b32 s58, s38')
        else:
            A('s_lshl_b32 s30, s2, 3'); A('s_lshl_b32 s31, s29, 2'); A('s_add_u32 s30, s30, s31')
            A('v_add_u32 v5, s30, v3')
            A('v_mul_u32_u24 v5, 1280, v5')
            A('v_lshl_add_u32 v5, v4, 7, v5')
            A('v_cmp_gt_u32 vcc, 40, v0'); A('v_mov_b32 v6, 0x40000000'); A('s_nop 0')
            A('v_cndmask_b32 v19, v6, v5, vcc')
            A('s_mul_i32 s30, s25, 6'); A('s_mul_i32 s31, s29, 3'); A('s_add_u32 s30, s30, s31')
            A('v_add_u32 v3, s30, v3')
            A('v_lshrrev_b32 v6, 6, v3')
            A('v_and_b32 v3, 63, v3')
            A('v_mul_u32_u24 v3, 1280, v3')
            A('v_lshl_add_u32 v3, v4, 7, v3')
            A('s_mov_b32 s30, 819200'); A('v_mul_lo_u32 v6, v6, s30'); A('v_add_u32 v3, v3, v6')
            A('v_cmp_gt_u32 vcc, 30, v0')
            A('s_mov_b32 s53, 0x80000000'); A('s_mov_b32 s55, 81920'); A('s_mov_b32 s58, s38'); A('s_mov_b32 s54, 0x7fffffff')
        A('s_waitcnt lgkmcnt(0)')
        A('s_mov_b32 s56, s6'); A('s_and_b32 s57, s7, 0xffff')
        self.lab('L_touch_j')
        A('s_mov_b32 s59, s35')
        A('v_mov_b32 v4, 0x40000000')
        A('v_cndmask_b32 v20, v4, v3, vcc')
        if o.wmode == 2:
            A('s_cmp_eq_u32 s54, -1'); A('s_cselect_b64 vcc, -1, 0'); A('s_cselect_b32 s52, s53, 0')
            A('s_nop 1')
            A('v_cndmask_b32 v19, v19, v20, vcc')

    def producer(self):
        A = self.A; o = self.opt
        A('v_lshrrev_b32 v2, 3, v0')
        A('v_lshrrev_b32 v3, 4, v0')
        A('s_and_b32 s29, s23, 1'); A('s_lshl_b32 s29, s29, 2')
        A('v_add_u32 v3, s29, v3')
        A('v_and_b32 v4, 7, v0')
        A('v_xor_b32 v4, v4, v3')
        A('v_mul_u32_u24 v2, 10240, v2')
        A('v_lshl_add_u32 v10, v4, 4, v2')
        A('s_mul_i32 s46, s23, 81920'); A('s_add_u32 s46, s46, s26')
        A('s_lshl_b32 s41, s23, 10')
        A('s_mov_b32 s51, 98304')
        A('s_mov_b32 s34, %d' % XBYTES); A('s_mov_b32 s35, 0x20000')
        done = set()
        def setup_w():
            if 'w' in done: return
            done.add('w')
            A('v_lshl_add_u32 v7, s23, 6, v0')
            for j in range(4):
                if j: A('v_add_u32 v7, 0x100, v7')
                self.div10(3, 4, 7)
                A('v_bfe_u32 v5, v3, 2, 2'); A('v_lshlrev_b32 v5, 3, v5')
                A('v_bfe_u32 v6, v3, 4, 1'); A('v_lshl_add_u32 v5, v6, 2, v5')
                A('v_and_b32 v6, 3, v3'); A('v_add_u32 v5, v5, v6')
                A('v_mul_u32_u24 v5, 1280, v5')
                A('v_lshl_add_u32 v5, v4, 4, v5')
                A('v_lshrrev_b32 v6, 5, v3')
                A('v_mul_u32_u24 v6, 819200, v6')
                A(f'v_add_u32 v{11+j}, v5, v6')
            A('s_lshl_b32 s42, s23, 10'); A(f's_add_u32 s42, s42, {WBASE}')
            A('s_mov_b32 s47, s27')
            A('s_mov_b32 s43, 0')
            A('s_movk_i32 s48, 0x4000'); A('s_mov_b32 s49, 40960'); A('s_mov_b32 s50, 0xffff')
            A('s_mov_b32 s39, s35')
        def setup_k():
            if 'k' in done: return
            done.add('k')
            A('s_waitcnt lgkmcnt(0)')
            A('s_mov_b32 s32, s4'); A('s_and_b32 s33, s5, 0xffff')
            A('s_mov_b32 s36, s6'); A('s_and_b32 s37, s7, 0xffff')
        def setup_t():
            if 't' in done or not o.touch: return
            done.add('t')
            self.touch_setup()
        A('s_mov_b32 s38, %d' % WBYTES)
        if not o.lazy:
            setup_w(); setup_t(); setup_k()
        if o.stouch:
            A('s_mul_i32 s82, s21, 1280'); A('s_add_u32 s82, s82, s46')
            A('s_add_u32 s80, s4, s82'); A('s_addc_u32 s81, s5, 0')
        sstate = [0]
        def stouch(ch):
            if ch > 9: return
            d = (ch - sstate[0]) * 128; sstate[0] = ch
            if d: A(f's_add_u32 s80, s80, {d}'); A('s_addc_u32 s81, s81, 0')
            for i in range(8):
                if o.stouch == 1: A(f's_load_dword s83, s[80:81], {i*10240}')
                elif o.stouch == 2: A(f's_load_dwordx2 s[84:85], s[80:81], {i*10240 + 60}')
                else:
                    A(f's_load_dword s83, s[80:81], {i*10240}'); A(f's_load_dword s83, s[80:81], {i*10240 + 64}')
        issued = []
        TR = (lambda: self.tr(30)) if not o.stouch else (lambda: None)
        self.tri = 0
        def dma(txt):
            if not o.nodma: A(txt)
        xseq = [0]; wseq = [0]
        def x_half(X, second, wrap=False):
            assert xseq[0] == 2*X + int(second), (xseq, X, second); xseq[0] += 1
            if wrap and o.mrot and not second:
                A('s_cmp_eq_u32 s46, s64'); A('s_cselect_b32 s46, s65, s46')
            n = (8 - o.xsplit) if second else o.xsplit
            if X < o.xsfrom: n = 4
            A('s_mov_b32 m0, s41')
            A('s_addk_i32 s41, %d' % (n*0x1000))
            for i in range(n):
                dma(f'buffer_load_dwordx4 v10, s[32:35], s46 offen {o.xaux} lds')
                issued.append(('x', X))
                if i < n - 1: A('s_addk_i32 m0, 0x1000')
                A('s_addk_i32 s46, %d' % (1280 if not (second and i == n - 1) else 1280 - 10240 + 128))
            if second:
                A('s_sub_u32 s44, s41, s51'); A('s_cselect_b32 s41, s41, s44')
        def w_step(t, wrap=False):
            assert wseq[0] == t, (wseq, t); wseq[0] += 1
            if wrap and o.mrot:
                A('s_cmp_eq_u32 s47, s66'); A('s_cselect_b32 s47, s27, s47')
            A('s_add_u32 m0, s42, s43')
            A('s_add_u32 s43, s43, s48')
            for j in range(4):
                dma(f'buffer_load_dwordx4 v{11+j}, s[36:39], s47 offen {o.waux} lds')
                issued.append(('w', t))
                if j < 3:
                    A('s_addk_i32 m0, 0x1000')
                    A('s_and_b32 s43, s43, s50' if j == 0 else 's_nop 0')
            A('s_add_u32 s47, s47, s49')
        tstate = [0]; tfirst = [0, 0, 0]
        def touch(ch, wrap=False):
            if not o.touch: return
            if ch > 9 and (o.dbg == 2 or o.unroll_p): return
            for _ in range(ch - tstate[0]): A('s_add_u32 s53, s53, s55')
            if wrap and o.mrot:
                A('s_cmp_eq_u32 s53, s67'); A('s_cselect_b32 s53, s26, s53')
            tstate[0] = ch
            if o.wmode == 2 and not tfirst[0]:
                tfirst[0] = 1
                if ch: A(f's_cmp_eq_u32 s54, -1'); A('s_cselect_b32 s52, s53, 0')
                A(f'buffer_load_dword v21, v19, s[56:59], s52 offen')
            else:
                if o.wmode == 2 and ch >= o.tw0 and not tfirst[1]:
                    tfirst[1] = 1; A('s_and_b32 s53, s53, s54')
                if o.wmode == 2 and ch > o.tw1 and not tfirst[2]:
                    tfirst[2] = 1; A('s_not_b32 s70, s54'); A('s_or_b32 s53, s53, s70')
                A(f'buffer_load_dword v21, v20, s[56:59], s53 offen')
            issued.append(('t', ch))
        def need(step):
            req = [i for i, tg in enumerate(issued) if tg == ('x', step >> 1) or tg == ('w', step)]
            return len(issued) - 1 - max(req)
        def dummyh(frac):
            n = 20 // frac
            for i in range(0, n, 2): A(f'v_pk_fma_f32 v[{70+i}:{71+i}], v[{100+i}:{101+i}], v[{120}:{121}], v[{122}:{123}]')
            for i in range(n): A(f'v_exp_f32 v{130+i}, v{70+i}')
            for i in range(0, n, 2): A(f'v_pk_fma_f32 v[{130+i}:{131+i}], v[{130+i}:{131+i}], v[{120}:{121}], v[{120}:{121}]')
            for i in range(n): A(f'v_rcp_f32 v{130+i}, v{130+i}')
            for i in range(0, n, 2): A(f'v_pk_mul_f32 v[{70+i}:{71+i}], v[{70+i}:{71+i}], v[{130+i}:{131+i}]')
            for i in range(0, n, 2): A(f'v_cvt_pk_bf16_f32 v{150+i//2}, v{70+i}, v{71+i}')
        def sync(t):
            if o.pspread and t >= 19 - o.pspread * o.pskip: dummyh(o.pspread)
            TR()
            n = need(t + 2) if t + 2 < NSTEP else None
            if n is not None: A(f's_waitcnt vmcnt({n})')
            TR()
            A('s_barrier')
            return n
        TR()
        def do(item):
            if item[0] == 't': setup_t()
            if item[0] == 'w': setup_w()
            setup_k()
            if item[0] == 'z':
                setup_w(); return
            if item[0] == 'y':
                A('s_waitcnt vmcnt(0)'); A('s_barrier'); return
            if item[0] == 'w': w_step(int(item[1:]))
            elif item[0] == 'x': x_half(int(item[1:-1]), item[-1] == 'b')
            elif item[0] == 't': touch(int(item[1:]))
            elif item[0] == 's': stouch(int(item[1:]))
        early = {}
        for part in o.early.split(';'):
            k, v = part.split(':'); early[int(k)] = [e for e in v.split(',') if e]
        for it in range(-2, 2*o.d0):
            for e in early.get(it, []): do(e)
            if it == -2: self.store_addr()
            sync(it)
        if o.dbg == 2 or o.unroll_p:
            for D in range(o.d0, 7):
                w_step(2*D + 3 + o.wa, True); x_half(D + 2, 0, True)
                if not o.todd and o.tl and not o.tc: (stouch(D + o.tl) if o.stouch else touch(D + o.tl, True))
                for e in early.get(2*D, []): do(e)
                sync(2*D)
                w_step(2*D + 4 + o.wa, True); x_half(D + 2, 1, True)
                if o.todd: touch(D + o.tl, True)
                sync(2*D + 1)
        else:
            A(f's_movk_i32 s45, {7 - o.d0}')
            self.lab('L_ploop')
            mark = len(self.L); ns = []
            for D in range(o.d0, 7):
                if D == o.d0 + 1: body_end = len(self.L)
                w_step(2*D + 3 + o.wa, True); x_half(D + 2, 0, True)
                if not o.todd and o.tl and not o.tc: touch(D + o.tl, True)
                a = sync(2*D)
                w_step(2*D + 4 + o.wa, True); x_half(D + 2, 1, True)
                if o.todd: touch(D + o.tl, True)
                b = sync(2*D + 1)
                ns.append((a, b))
            if len(set(ns)) != 1:
                mn = (min(a for a, b in ns), min(b for a, b in ns))
                sys.stderr.write(f'loop vmcnt variants {ns} -> {mn}\n')
            body = self.L[mark:body_end]
            mn = (min(a for a, b in ns), min(b for a, b in ns))
            it = iter(mn)
            body = [f'  s_waitcnt vmcnt({next(it)})' if l.strip().startswith('s_waitcnt vmcnt') else l for l in body]
            self.L = self.L[:mark] + body
            A('s_sub_u32 s45, s45, 1'); A('s_cmp_lg_u32 s45, 0'); A('s_cbranch_scc1 L_ploop')
        w_step(17 + o.wa); x_half(9, 0); sync(14)
        w_step(18 + o.wa); x_half(9, 1); sync(15)
        if not o.wa: w_step(19)
        def dummy(nph):
            for _ in range(nph):
                for i in range(0, 20, 2): A(f'v_pk_fma_f32 v[{70+i}:{71+i}], v[{100+i}:{101+i}], v[{120}:{121}], v[{122}:{123}]')
                for i in range(20): A(f'v_exp_f32 v{130+i}, v{70+i}')
                for i in range(0, 20, 2): A(f'v_pk_fma_f32 v[{130+i}:{131+i}], v[{130+i}:{131+i}], v[{120}:{121}], v[{120}:{121}]')
                for i in range(20): A(f'v_rcp_f32 v{130+i}, v{130+i}')
                for i in range(0, 20, 2): A(f'v_pk_mul_f32 v[{70+i}:{71+i}], v[{70+i}:{71+i}], v[{130+i}:{131+i}]')
                for i in range(0, 20, 2): A(f'v_cvt_pk_bf16_f32 v{150+i//2}, v{70+i}, v{71+i}')
        if o.pvalu >= 1: dummy(1)
        sync(16)
        if o.pvalu >= 2: dummy(1)
        sync(17)
        if o.pvalu >= 3: dummy(1)
        sync(18)
        if o.stouch: A('s_waitcnt lgkmcnt(0)')
        phases = self.phases()
        nrow = 0
        for ph, rows in enumerate(phases):
            A('s_barrier')
            aux = o.saux if ph < len(phases) - o.plain else o.saux2
            items = []
            for s_ in rows:
                D = 40 + 8*(nrow % 4); nrow += 1
                for j in range(2):
                    A(f'ds_read_b128 v[{D+4*j}:{D+4*j+3}], v{22+j} offset:{s_*32*ORS}')
                    items.append((D + 4*j, j, s_))
            for i, (D, j, s_) in enumerate(items if not o.nostore else []):
                A(f's_waitcnt lgkmcnt({len(items) - 1 - i})')
                off = (s_ % 4)*1280
                A(f'buffer_store_dwordx4 v[{D}:{D+3}], v{26+j}, s[72:75], s{76 + (s_ >> 2)} offen {("offset:%d" % off) if off else ""} {aux}')
        if o.dbg == 2 and not o.stouch:
            A('s_waitcnt vmcnt(0)'); TR(); self.tr_end(30, 1)
        self.lab('L_exit')
        A('s_endpgm')

    def store_addr(self):
        A = self.A
        A('s_mov_b32 s72, s16'); A('s_and_b32 s73, s17, 0xffff'); A('s_mov_b32 s74, s34'); A('s_mov_b32 s75, s35')
        A('s_add_u32 s76, s26, s27'); A('s_add_u32 s77, s76, 5120')
        A(f's_mul_i32 s78, s23, {8*ORS}'); A('s_mul_i32 s79, s23, 81920')
        for j in range(2):
            A(f'v_add_u32 v3, {64*j}, v0')
            if j == 1: A('v_min_u32 v3, 79, v3')
            self.div10(4, 5, 3)
            A(f'v_mul_u32_u24 v6, {ORS}, v4')
            A(f'v_lshl_add_u32 v6, v5, 4, v6')
            A(f'v_add_u32 v{22+j}, s78, v6')
            A(f'v_mul_u32_u24 v6, 10240, v4')
            A(f'v_lshl_add_u32 v6, v5, 4, v6')
            A(f'v_add_u32 v{26+j}, s79, v6')
        A('v_cmp_gt_u32 vcc, 16, v0')
        A('v_mov_b32 v7, 0x40000000')
        A('s_nop 0')
        A('v_cndmask_b32 v27, v7, v27, vcc')

    def phases(self):
        return [[int(x) for x in p.split(',')] for p in self.opt.phases.split('|')]

    def mfma_list(self, hi):
        out = []
        for s_in in range(8):
            for k in range(3):
                s_out = s_in + 1 - k
                if not 0 <= s_out < 8: continue
                out.append((s_out, (k, 0), s_in))
                out.append((8 + s_out, (k, 1), s_in))
                if (not hi and s_out < 4): out.append((16 + s_out, (k, 2), s_in))
                if (hi and s_out >= 4): out.append((16 + s_out - 4, (k, 2), s_in))
        assert len(out) == 55
        od = self.opt.order
        sval = lambda b: (b % 8) if b < 16 else (b - 16 + (4 if hi else 0))
        if od == 2: out.sort(key=lambda e: (e[0], e[1][0]))
        elif od == 3: out.sort(key=lambda e: (sval(e[0]), e[1][1], e[1][0]))
        elif od == 5: out.sort(key=lambda e: (e[0], -e[1][0]) if e[0] % 2 else (e[0], e[1][0]))
        elif od == 6: out.sort(key=lambda e: (e[1][1], sval(e[0]), e[1][0] if sval(e[0]) % 2 == 0 else -e[1][0]))
        return out
    def ncols(self, hi): return [3, 4, 2] if hi else [0, 1, 2]
    def reads(self, step, hi):
        st = step & 1
        xs = (step >> 1) % NXS; kk = step & 1; ws = step % NWS
        nc = self.ncols(hi)
        xr = []
        for s in range(8):
            va = (V_XA if xs < 2 else V_XB)[kk]
            off = (xs*XSLOT if xs < 2 else 0) + s*4096
            d = SETX[st] + 4*s
            xr.append(f'ds_read_b128 v[{d}:{d+3}], v{va} offset:{off}')
        wr = []
        for k in range(3):
            for g in range(3):
                for u in range(2):
                    d = SETW[st] + (k*3 + g)*4 + 2*u
                    off = ws*WSLOT + k*5120 + u*2560 + nc[g]*32
                    wr.append(f'ds_read_b64_tr_b16 v[{d}:{d+1}], v{V_W} offset:{off}')
        r = []
        while xr or wr:
            if wr: r.append(wr.pop(0))
            if wr: r.append(wr.pop(0))
            if xr: r.append(xr.pop(0))
        return r
    def params_code(self):
        M, V, G, B = V_RAW, V_RAW+1, V_RAW+2, V_RAW+3
        c = ['s_waitcnt vmcnt(0)']
        for r in (M, V, G, B): c.append(f'v_lshlrev_b32 v{r}, 16, v{r}')
        c += [f'v_add_f32 v{V}, 0x3727c5ac, v{V}', f'v_rsq_f32 v{V}, v{V}', f'v_mul_f32 v{G}, 0xbfb8aa3b, v{G}',
              f'v_mul_f32 v{B}, 0xbfb8aa3b, v{B}', f'v_mul_f32 v{V_RAW+4}, v{G}, v{V}', f'v_fma_f32 v{V_RAW+5}, -v{M}, v{V_RAW+4}, v{B}']
        return c

    def consumer(self, hi):
        A = self.A; o = self.opt
        tag = 'hi' if hi else 'lo'
        start = len(self.L)
        self.lab(f'L_cons_{tag}')
        nc = self.ncols(hi)
        A('s_lshr_b32 s28, s23, 1')
        A('v_and_b32 v1, 15, v0')
        A('v_lshrrev_b32 v2, 4, v0')
        A('v_lshrrev_b32 v3, 1, v1')
        A('v_xor_b32 v3, v3, v2')
        A('v_lshlrev_b32 v3, 4, v3')
        A('v_lshl_add_u32 v3, v1, 7, v3')
        A('s_lshl_b32 s29, s28, 11')
        A(f'v_add_u32 v{V_XA[0]}, s29, v3')
        A(f'v_xor_b32 v{V_XA[1]}, 64, v{V_XA[0]}')
        A(f'v_add_u32 v{V_XB[0]}, 0x10000, v{V_XA[0]}')
        A(f'v_add_u32 v{V_XB[1]}, 0x10000, v{V_XA[1]}')
        A('v_lshrrev_b32 v3, 2, v1')
        A('v_lshl_add_u32 v3, v2, 2, v3')
        A('v_mul_u32_u24 v3, 160, v3')
        A('v_and_b32 v4, 3, v1')
        A('v_lshl_add_u32 v3, v4, 3, v3')
        A(f'v_add_u32 v{V_W}, {WBASE}, v3')
        A('s_lshl_b32 s29, s28, 4')
        A('v_add_u32 v3, s29, v1')
        A(f'v_mul_u32_u24 v3, {ORS}, v3')
        A(f'v_lshl_add_u32 v{V_OUT}, v2, 3, v3')
        A(f'v_lshlrev_b32 v3, 4, v2'); A(f'v_add_u32 v{V_PA}, {PB}, v3')
        A('v_min_u32 v3, 19, v0'); A('s_mul_i32 s29, s23, 20'); A('v_add_u32 v3, s29, v3')
        A(f'v_lshlrev_b32 v4, 2, v3'); A(f'v_add_u32 v{V_PW}, {PB}, v4')
        tcs = {}
        if o.tc:
            for e in o.tcs.split(','):
                p_, c_ = e.split(':'); tcs.setdefault(p_, []).append(int(c_))
            A('s_lshl_b32 s29, s23, 3'); A('v_add_u32 v3, s29, v0'); A('v_mul_u32_u24 v3, 10240, v3')
            A('s_mul_i32 s29, s21, 1280'); A('v_add_u32 v3, s29, v3')
            A('v_cmp_gt_u32 vcc, 8, v0'); A('v_mov_b32 v4, 0x40000000')
            A('s_mov_b32 s40, s4'); A('s_and_b32 s41, s5, 0xffff'); A(f's_mov_b32 s42, {XBYTES}'); A('s_mov_b32 s43, 0x20000')
            A('v_cndmask_b32 v169, v4, v3, vcc')
            A('s_mov_b32 s44, s26')
        cpos = [0]; nissued = [0]
        def ct(ch):
            r = []
            d = (ch - cpos[0]) * 128; cpos[0] = ch
            if d: r.append(f's_addk_i32 s44, {d}')
            r.append('buffer_load_dword v170, v169, s[40:43], s44 offen')
            nissued[0] += 1
            return r
        for ch in tcs.get('S', []):
            for ins in ct(ch): A(ins)
        if o.pads:
            A('s_cmp_eq_u32 s28, 0'); A(f's_cbranch_scc1 L_pad_{tag}_1')
            A('s_cmp_eq_u32 s28, 1'); A(f's_branch L_pad_{tag}_3')
            self.lab(f'L_warm_{tag}')
        if o.prio: A(f's_setprio {o.prio}')
        A('s_cmp_lg_u32 s2, s2')
        TR = lambda: self.tr(V_TRC)
        self.tri = 0
        if ',y' in o.early: A('s_barrier')
        TR()
        A('s_barrier')
        TR(); self.sp('Bm1')
        for ch in tcs.get('M', []):
            for ins in ct(ch): A(ins)
            A('s_cmp_lg_u32 s2, s2')
        for r in self.reads(0, hi): A(r)
        A('s_waitcnt lgkmcnt(0)')
        if not o.b0late:
            A('s_barrier')
            TR(); self.sp('B0')
        ml = self.mfma_list(hi)
        for t in range(NSTEP):
            st = t & 1
            self.raw(f'; step {t}')
            fill = self.reads(t + 1, hi) if t + 1 < NSTEP else []
            span = o.rdspan
            extra = {}
            nbefore = nissued[0]
            for ch in tcs.get(str(t), []):
                extra.setdefault(o.tcpos, []).extend(ct(ch) + ['s_cmp_lg_u32 s2, s2'])
            if t == o.pstep:
                pc = self.params_code()
                pc[0] = f's_waitcnt vmcnt({nbefore})'
                for i, ins in enumerate(pc): extra.setdefault(1 + 4*i, []).append(ins)
            if t == 17:
                extra.setdefault(50, []).append(f'ds_write_b32 v{V_PW}, v{V_RAW+4}')
                extra.setdefault(51, []).append(f'ds_write_b32 v{V_PW}, v{V_RAW+5} offset:320')
            if t == NSTEP - 1:
                fill = []
                for g in range(3):
                    fill.append(f'ds_read_b128 v[{E_SC+4*g}:{E_SC+4*g+3}], v{V_PA} offset:{nc[g]*64}')
                    fill.append(f'ds_read_b128 v[{E_SH+4*g}:{E_SH+4*g+3}], v{V_PA} offset:{320 + nc[g]*64}')
                fill += [f'v_mov_b32 v{E_C}, 0xbfb8aa3b', f'v_mov_b32 v{E_C+1}, 0xbfb8aa3b']
                span = 30
            seen = set(); ri = 0
            for mi, (blk, (k, g), s_in) in enumerate(ml):
                a = ACC + 4*blk
                w = SETW[st] + (k*3 + g)*4; x = SETX[st] + 4*s_in
                c = f'v[{a}:{a+3}]'
                if t == 0 and blk not in seen: c = '0'
                seen.add(blk)
                if o.agpr:
                    aa = 4*blk
                    cc = '0' if c == '0' else f'a[{aa}:{aa+3}]'
                    A(f'v_mfma_f32_16x16x32_bf16 a[{aa}:{aa+3}], v[{w}:{w+3}], v[{x}:{x+3}], {cc}')
                    due = 0
                    if t == 0 and o.b0late:
                        if mi == o.b0late - 1:
                            A('s_barrier'); TR(); self.sp('B0')
                        due = max(0, mi + 1 - o.b0late) * len(fill) // (50 - o.b0late)
                    else:
                        due = (mi + 1) * len(fill) // span if fill else 0
                    while ri < min(due, len(fill)):
                        A(fill[ri]); ri += 1
                    for ins in extra.get(mi, []): A(ins)
                    continue
                if o.swapab: A(f'v_mfma_f32_16x16x32_bf16 v[{a}:{a+3}], v[{x}:{x+3}], v[{w}:{w+3}], {c}')
                else: A(f'v_mfma_f32_16x16x32_bf16 v[{a}:{a+3}], v[{w}:{w+3}], v[{x}:{x+3}], {c}')
                if t == 0 and o.b0late:
                    if mi == o.b0late - 1:
                        A('s_barrier'); TR(); self.sp('B0')
                    due = max(0, mi + 1 - o.b0late) * len(fill) // (50 - o.b0late)
                else:
                    due = (mi + 1) * len(fill) // span if fill else 0
                while ri < min(due, len(fill)):
                    A(fill[ri]); ri += 1
                for ins in extra.get(mi, []): A(ins)
            assert ri == len(fill)
            if t + 1 < NSTEP:
                A('s_waitcnt lgkmcnt(0)')
                A('s_barrier')
                TR(); self.sp(f'B{t+1}')
        TR(); self.sp('lend')
        A('s_waitcnt lgkmcnt(0)')
        A('s_nop 6')
        phases = self.phases()
        def blocks_of(s_, h_):
            r = []
            for g in range(3):
                if g == 2 and ((s_ >= 4) != h_): continue
                r.append(((g*8 + s_) if g < 2 else 16 + (s_ - 4 if h_ else s_), g, s_))
            return r
        seq = [b for rows in phases for s_ in rows for b in blocks_of(s_, hi)]
        cum = []; lo_c = hi_c = 0
        for rows in phases:
            lo_c += sum(len(blocks_of(s_, False)) for s_ in rows); hi_c += sum(len(blocks_of(s_, True)) for s_ in rows)
            cum.append(max(lo_c, hi_c))
        prev = 0
        for ph, c_ in enumerate(cum):
            blks = seq[prev:c_]; prev = c_
            n = 4*len(blks)
            assert n <= 20
            for bi, (blk, g, s) in enumerate(blks):
                a = ACC + 4*blk; U = E_U + 4*bi; sc = E_SC + 4*g; sh = E_SH + 4*g
                for p in (0, 2): A(f'v_pk_fma_f32 v[{U+p}:{U+p+1}], v[{a+p}:{a+p+1}], v[{sc+p}:{sc+p+1}], v[{sh+p}:{sh+p+1}]')
            for i in range(n): A(f'v_exp_f32 v{E_E+i}, v{E_U+i}')
            if ph > 0:
                A('s_waitcnt lgkmcnt(0)'); A('s_barrier'); TR()
            for i in range(0, n, 2): A(f'v_pk_fma_f32 v[{E_E+i}:{E_E+i+1}], v[{E_E+i}:{E_E+i+1}], v[{E_C}:{E_C+1}], v[{E_C}:{E_C+1}]')
            for i in range(n): A(f'v_rcp_f32 v{E_E+i}, v{E_E+i}')
            for i in range(0, n, 2): A(f'v_pk_mul_f32 v[{E_U+i}:{E_U+i+1}], v[{E_U+i}:{E_U+i+1}], v[{E_E+i}:{E_E+i+1}]')
            for bi, (blk, g, s) in enumerate(blks):
                U = E_U + 4*bi; F = E_F + 2*bi
                A(f'v_cvt_pk_bf16_f32 v{F}, v{U}, v{U+1}')
                A(f'v_cvt_pk_bf16_f32 v{F+1}, v{U+2}, v{U+3}')
                A(f'ds_write_b64 v{V_OUT}, v[{F}:{F+1}] offset:{s*32*ORS + nc[g]*32}')
        A('s_waitcnt lgkmcnt(0)'); A('s_barrier'); TR()
        self.tr_end(V_TRC, 0)
        self.sp('E3')
        if o.spinpt:
            A('s_cmp_eq_u32 s2, 0'); A(f's_cbranch_scc0 L_end_{tag}')
            A('s_cmp_eq_u32 s23, 0'); A(f's_cbranch_scc0 L_end_{tag}')
            A('s_waitcnt lgkmcnt(0)')
            A('s_sub_u32 s44, s92, s60'); A(f's_mul_i32 s44, s44, {o.spinm}')
            self.lab(f'L_spin_{tag}')
            A('s_memrealtime s[66:67]'); A('s_waitcnt lgkmcnt(0)')
            A('s_sub_u32 s45, s66, s60'); A('s_cmp_lt_u32 s45, s44'); A(f's_cbranch_scc1 L_spin_{tag}')
        self.lab(f'L_end_{tag}')
        A('s_endpgm')
        body = self.L[start:]
        sizes = isizes(body)
        out = []; off = 0; page = 1
        total = sum(sizes)
        npages = (total + 4*8 + 4095) // 4096
        for l, sz in zip(body, sizes):
            if o.pads and off >= page*4096 and sz and page <= 3:
                nxt = f'L_pad_{tag}_2' if page == 1 else f'L_warm_{tag}'
                out.append(f'L_pad_{tag}_{page}:'); out.append(f'  s_cbranch_scc1 {nxt}')
                off += 4; page += 1
            out.append(l); off += sz
        if o.pads:
            assert page == 4, f'expected 4 pages, got {page} (size {off})'
            assert off <= 4*4096 + (4096 if o.dbg or o.spinpt else 0), off
        self.L = self.L[:start] + out
        self.sizes[tag] = off

    def build(self):
        o = self.opt; R = self.raw
        self.sizes = {}
        R(HEADER.rstrip('\n'))
        R(f'; @launch grid=(256,1,1) block=(512,1,1) lds={LDS_BYTES}')
        R(DOC)
        R('.amdgcn_target "amdgcn-amd-amdhsa--gfx950"'); R('.text'); R(f'.globl {NAME}'); R('.p2align 8'); R(f'.type {NAME},@function')
        self.lab(NAME)
        s0 = len(self.L)
        self.entry()
        self.producer()
        A = self.A
        self.lab('L_cons_sel')
        A('s_sub_u32 s23, s23, 4')
        A('v_min_u32 v3, 19, v0'); A('s_mul_i32 s29, s23, 20'); A('v_add_u32 v3, s29, v3')
        A('v_lshlrev_b32 v3, 1, v3'); A('v_add_u32 v3, s27, v3')
        A('s_waitcnt lgkmcnt(0)')
        for i, sp in enumerate([8, 10, 12, 14]):
            A(f'global_load_ushort v{V_RAW+i}, v3, s[{sp}:{sp+1}]')
        A('s_bitcmp1_b32 s23, 0'); A('s_cbranch_scc1 L_cons_hi'); A('s_branch L_cons_lo')
        self.sizes['prod'] = sum(isizes(self.L[s0:]))
        R('.p2align 12')
        self.consumer(False)
        R('.p2align 12')
        self.consumer(True)
        R('.section .rodata,"a"'); R('.p2align 6'); R(f'.amdhsa_kernel {NAME}')
        R('  .amdhsa_next_free_vgpr 256'); R('  .amdhsa_next_free_sgpr 96'); R('  .amdhsa_accum_offset %d' % (176 if o.agpr else 256))
        R('  .amdhsa_group_segment_fixed_size 0'); R('  .amdhsa_kernarg_size 72'); R('  .amdhsa_user_sgpr_count 2')
        R('  .amdhsa_user_sgpr_kernarg_segment_ptr 1'); R('  .amdhsa_system_sgpr_workgroup_id_x 1'); R('.end_amdhsa_kernel')
        sys.stderr.write(f'sizes: {self.sizes}\n')
        return '\n'.join(self.L) + '\n'

def parse(argv):
    p = argparse.ArgumentParser()
    p.add_argument('-o', default='standalone__batchnorm__sampling.s')
    for k, v in dict(dbg=0, rdspan=48, nodma=0, touch=1, t0=3, prio=0, meta=0, pads=1, pstep=8, unroll_p=0, spinm=20, cyc=0, b0late=20, wmode=1, tl=3, wa=0, swapab=0, order=5, pvalu=0, pspread=0, pskip=0, mrot=0, stouch=0, todd=0, xmulti=0, nostore=0, lazy=1, xsplit=4, xsfrom=4, tw0=3, tw1=99, agpr=0, tc=0, tcpos=50).items():
        p.add_argument('--' + k, type=int, default=v)
    p.add_argument('--spinpt', default='')
    p.add_argument('--phases', default='0,4|1,5|2,6|3,7'); p.add_argument('--plain', type=int, default=1)
    p.add_argument('--tcs', default='S:1,S:2,M:3,1:4,4:5,6:6,8:7,10:8,12:9')
    p.add_argument('--early', default='-2:x0a,t0,x0b,w0,t1,t2,w1;-1:x1a,x1b,w2,t3;0:w3,x2a;1:w4,x2b,t4;2:w5,x3a;3:w6,x3b')
    p.add_argument('--d0', type=int, default=2)
    p.add_argument('--xaux', default=''); p.add_argument('--waux', default=''); p.add_argument('--saux', default='nt'); p.add_argument('--saux2', default=''); p.add_argument('--sauxn', type=int, default=3)
    return p.parse_args(argv)

from gen import META
if __name__ == '__main__':
    o = parse(sys.argv[1:])
    s = Gen(o).build()
    if o.meta: s += META.format(name=NAME)
    open(o.o, 'w').write(s)
```

```python
import sys, argparse, subprocess, re

NAME = 'standalone__batchnorm__sampling_kernel'
HEADER = open('standalone__batchnorm__sampling.s.ref').read().split('; Override launch')[0]

XSLOT = 32768; NXS = 3
WBASE = XSLOT*NXS; WSLOT = 16384; NWS = 4
LDS_BYTES = WBASE + WSLOT*NWS
ORS = 176
import os
ORS = int(os.environ.get('ORS', ORS))
PB = 49152
NSTEP = 20
XBYTES = 1024*8*640*2; WBYTES = 3*640*640*2

SETX = [0, 68]; SETW = [32, 100]
V_RAW = 136
V_XA = [160, 161]; V_XB = [162, 163]; V_W = 164
V_OUT = 165; V_PA = 166; V_PW = 167
V_TRC = 168
ACC = 176
E_U = 0; E_E = 20; E_F = 40; E_SC = 52; E_SH = 136; E_C = 64

DOC = """; ---------------------------------------------------------------------------------------------------------------
; ---------------------------------------------------------------------------------------------------------------"""

_size_cache = {}
def isizes(lines):
    todo = []
    def key(l):
        l = l.split(';')[0].strip()
        if not l or l.endswith(':') or l.startswith('.'): return None
        l = re.sub(r'\bL_[A-Za-z0-9_]+', '0', l)
        return l
    for l in lines:
        k = key(l)
        if k is not None and k not in _size_cache and k not in todo: todo.append(k)
    if todo:
        r = subprocess.run(['llvm-mc', '-triple=amdgcn-amd-amdhsa', '-mcpu=gfx950', '-show-encoding'], input='\n'.join(todo) + '\n', capture_output=True, text=True)
        enc = re.findall(r'encoding: \[([^\]]*)\]', r.stdout)
        assert len(enc) == len(todo), (len(enc), len(todo), r.stderr[:2000])
        for k, e in zip(todo, enc): _size_cache[k] = len(e.split(','))
    return [0 if key(l) is None else _size_cache[key(l)] for l in lines]

class Gen:
    def __init__(self, opt):
        self.L = []; self.opt = opt; self.tri = 0; self.uid = 0
    def A(self, s): self.L.append('  ' + s)
    def lab(self, s): self.L.append(s + ':')
    def raw(self, s): self.L.append(s)
    def tr(self, vreg):
        if self.opt.dbg != 2: return
        A = self.A; i = self.tri
        if i > 0:
            A('s_waitcnt lgkmcnt(0)')
            A(f'v_writelane_b32 v{vreg}, s{88 + 2*((i-1)&1)}, {i-1}')
        A(f's_mem{"time" if self.opt.cyc else "realtime"} s[{88 + 2*(i&1)}:{89 + 2*(i&1)}]')
        self.tri += 1
    def tr_end(self, vreg, slot):
        if self.opt.dbg != 2: return
        A = self.A; i = self.tri
        A('s_waitcnt lgkmcnt(0)')
        A(f'v_writelane_b32 v{vreg}, s{88 + 2*((i-1)&1)}, {i-1}')
        A(f'v_writelane_b32 v{vreg}, s60, 63')
        A(f's_cmp_eq_u32 s23, 0'); A(f's_cbranch_scc0 L_trskip{self.uid}')
        A('v_mbcnt_lo_u32_b32 v2, -1, 0'); A('v_mbcnt_hi_u32_b32 v2, -1, v2')
        A(f's_lshl_b32 s44, s2, 9'); A(f's_add_u32 s44, s44, {262144 + slot*256}')
        A('v_lshl_add_u32 v2, v2, 2, s44')
        A(f'global_store_dword v2, v{vreg}, s[62:63]')
        self.lab(f'L_trskip{self.uid}'); self.uid += 1
    def sp(self, name):
        if self.opt.spinpt == name: self.A('s_memrealtime s[92:93]')

    def div10(self, vrow, vpiece, vsrc):
        A = self.A
        A(f'v_mul_u32_u24 v{vrow}, 6554, v{vsrc}')
        A(f'v_lshrrev_b32 v{vrow}, 16, v{vrow}')
        A(f'v_mul_u32_u24 v{vpiece}, 10, v{vrow}')
        A(f'v_sub_u32 v{vpiece}, v{vsrc}, v{vpiece}')

    def entry(self):
        A = self.A; o = self.opt
        A('s_load_dwordx16 s[4:19], s[0:1], 0')
        A('s_cmp_ge_u32 s2, 256'); A('s_cbranch_scc1 L_exit')
        if o.dbg or o.spinpt:
            A('s_memrealtime s[60:61]')
            A('s_load_dwordx2 s[62:63], s[0:1], 64')
        A('v_lshrrev_b32 v1, 6, v0')
        A('v_and_b32 v0, 63, v0')
        A('s_and_b32 s20, s2, 7')
        A('v_readfirstlane_b32 s23, v1')
        A('s_lshr_b32 s25, s2, 3')
        A('s_lshr_b32 s22, s25, 3')
        A('s_and_b32 s21, s25, 7')
        A('s_lshl_b32 s20, s20, 2')
        A('s_add_u32 s20, s20, s22')
        A('s_mul_i32 s26, s20, 327680')
        A('s_mul_i32 s27, s21, 160')
        A('s_cmp_ge_u32 s23, 4')
        A('s_cbranch_scc1 L_cons_sel')
        self.lab('L_producer')

    def touch_setup(self):
        A = self.A; o = self.opt
        A('s_and_b32 s29, s23, 1')
        A('s_and_b32 s28, s23, 2')
        A('s_cmp_eq_u32 s28, 0'); A('s_cbranch_scc0 L_touch_w')
        A('s_lshl_b32 s30, s29, 4')
        if o.xmulti:
            A('v_and_b32 v5, 15, v0'); A('v_add_u32 v3, s30, v5'); A('v_mul_u32_u24 v3, 10240, v3')
            A('v_lshrrev_b32 v5, 4, v0'); A('v_lshl_add_u32 v3, v5, 7, v3')
            A('s_mul_i32 s30, s21, 1280'); A('v_add_u32 v3, s30, v3')
            A(f'v_cmp_gt_u32 vcc, {16*o.xmulti}, v0')
        else:
            A('v_add_u32 v3, s30, v0'); A('v_mul_u32_u24 v3, 10240, v3')
            A('s_mul_i32 s30, s21, 1280'); A('v_add_u32 v3, s30, v3')
            A('v_cmp_gt_u32 vcc, 16, v0')
        A('s_mov_b32 s53, s26'); A('s_movk_i32 s55, 128'); A('s_mov_b32 s58, s34')
        if o.wmode == 2: A('s_mov_b32 s54, -1'); A('v_mov_b32 v19, 0')
        if o.mrot:
            A('s_add_u32 s67, s53, 1280'); A('s_add_u32 s53, s53, s69')
        A('s_waitcnt lgkmcnt(0)')
        A('s_mov_b32 s56, s4'); A('s_and_b32 s57, s5, 0xffff')
        A('s_branch L_touch_j')
        self.lab('L_touch_w')
        self.div10(3, 4, 0)
        if o.wmode == 0:
            A('s_mul_i32 s30, s25, 6'); A('s_mul_i32 s31, s29, 3'); A('s_add_u32 s30, s30, s31')
            A('v_add_u32 v3, s30, v3')
            A('v_lshrrev_b32 v6, 6, v3')
            A('v_and_b32 v3, 63, v3')
            A('v_mul_u32_u24 v3, 1280, v3')
            A('v_lshl_add_u32 v3, v4, 7, v3')
            A('s_mov_b32 s30, 819200'); A('v_mul_lo_u32 v6, v6, s30'); A('v_add_u32 v3, v3, v6')
            A('v_cmp_gt_u32 vcc, 30, v0')
            A('s_mov_b32 s53, 0'); A('s_mov_b32 s55, 81920'); A('s_mov_b32 s58, s38')
        elif o.wmode == 1:
            A('s_lshl_b32 s30, s2, 3'); A('s_lshl_b32 s31, s29, 2'); A('s_add_u32 s30, s30, s31')
            A('v_add_u32 v3, s30, v3')
            A('v_mul_u32_u24 v3, 1280, v3')
            A('v_lshl_add_u32 v3, v4, 7, v3')
            A('v_cmp_gt_u32 vcc, 40, v0')
            first = min(int(e[1:]) for part in o.early.split(';') for e in part.split(':')[1].split(',') if e and e[0] == 't')
            A(f's_mov_b32 s53, {(-first*0x4000000) & 0xffffffff:#x}'); A('s_mov_b32 s55, 0x4000000'); A('s_mov_b32 s58, s38')
        else:
            A('s_lshl_b32 s30, s2, 3'); A('s_lshl_b32 s31, s29, 2'); A('s_add_u32 s30, s30, s31')
            A('v_add_u32 v5, s30, v3')
            A('v_mul_u32_u24 v5, 1280, v5')
            A('v_lshl_add_u32 v5, v4, 7, v5')
            A('v_cmp_gt_u32 vcc, 40, v0'); A('v_mov_b32 v6, 0x40000000'); A('s_nop 0')
            A('v_cndmask_b32 v19, v6, v5, vcc')
            A('s_mul_i32 s30, s25, 6'); A('s_mul_i32 s31, s29, 3'); A('s_add_u32 s30, s30, s31')
            A('v_add_u32 v3, s30, v3')
            A('v_lshrrev_b32 v6, 6, v3')
            A('v_and_b32 v3, 63, v3')
            A('v_mul_u32_u24 v3, 1280, v3')
            A('v_lshl_add_u32 v3, v4, 7, v3')
            A('s_mov_b32 s30, 819200'); A('v_mul_lo_u32 v6, v6, s30'); A('v_add_u32 v3, v3, v6')
            A('v_cmp_gt_u32 vcc, 30, v0')
            A('s_mov_b32 s53, 0x80000000'); A('s_mov_b32 s55, 81920'); A('s_mov_b32 s58, s38'); A('s_mov_b32 s54, 0x7fffffff')
        A('s_waitcnt lgkmcnt(0)')
        A('s_mov_b32 s56, s6'); A('s_and_b32 s57, s7, 0xffff')
        self.lab('L_touch_j')
        A('s_mov_b32 s59, s35')
        A('v_mov_b32 v4, 0x40000000')
        A('v_cndmask_b32 v20, v4, v3, vcc')
        if o.wmode == 2:
            A('s_cmp_eq_u32 s54, -1'); A('s_cselect_b64 vcc, -1, 0'); A('s_cselect_b32 s52, s53, 0')
            A('s_nop 1')
            A('v_cndmask_b32 v19, v19, v20, vcc')

    def producer(self):
        A = self.A; o = self.opt
        A('v_lshrrev_b32 v2, 3, v0')
        A('v_lshrrev_b32 v3, 4, v0')
        A('s_and_b32 s29, s23, 1'); A('s_lshl_b32 s29, s29, 2')
        A('v_add_u32 v3, s29, v3')
        A('v_and_b32 v4, 7, v0')
        A('v_xor_b32 v4, v4, v3')
        A('v_mul_u32_u24 v2, 10240, v2')
        A('v_lshl_add_u32 v10, v4, 4, v2')
        A('s_mul_i32 s46, s23, 81920'); A('s_add_u32 s46, s46, s26')
        A('s_lshl_b32 s41, s23, 10')
        A('s_mov_b32 s51, 98304')
        A('s_mov_b32 s34, %d' % XBYTES); A('s_mov_b32 s35, 0x20000')
        done = set()
        def setup_w():
            if 'w' in done: return
            done.add('w')
            A('v_lshl_add_u32 v7, s23, 6, v0')
            for j in range(4):
                if j: A('v_add_u32 v7, 0x100, v7')
                self.div10(3, 4, 7)
                A('v_bfe_u32 v5, v3, 2, 2'); A('v_lshlrev_b32 v5, 3, v5')
                A('v_bfe_u32 v6, v3, 4, 1'); A('v_lshl_add_u32 v5, v6, 2, v5')
                A('v_and_b32 v6, 3, v3'); A('v_add_u32 v5, v5, v6')
                A('v_mul_u32_u24 v5, 1280, v5')
                A('v_lshl_add_u32 v5, v4, 4, v5')
                A('v_lshrrev_b32 v6, 5, v3')
                A('v_mul_u32_u24 v6, 819200, v6')
                A(f'v_add_u32 v{11+j}, v5, v6')
            A('s_lshl_b32 s42, s23, 10'); A(f's_add_u32 s42, s42, {WBASE}')
            A('s_mov_b32 s47, s27')
            A('s_mov_b32 s43, 0')
            A('s_movk_i32 s48, 0x4000'); A('s_mov_b32 s49, 40960'); A('s_mov_b32 s50, 0xffff')
            A('s_mov_b32 s39, s35')
        def setup_k():
            if 'k' in done: return
            done.add('k')
            A('s_waitcnt lgkmcnt(0)')
            A('s_mov_b32 s32, s4'); A('s_and_b32 s33, s5, 0xffff')
            A('s_mov_b32 s36, s6'); A('s_and_b32 s37, s7, 0xffff')
        def setup_t():
            if 't' in done or not o.touch: return
            done.add('t')
            self.touch_setup()
        A('s_mov_b32 s38, %d' % WBYTES)
        if not o.lazy:
            setup_w(); setup_t(); setup_k()
        if o.stouch:
            A('s_mul_i32 s82, s21, 1280'); A('s_add_u32 s82, s82, s46')
            A('s_add_u32 s80, s4, s82'); A('s_addc_u32 s81, s5, 0')
        sstate = [0]
        def stouch(ch):
            if ch > 9: return
            d = (ch - sstate[0]) * 128; sstate[0] = ch
            if d: A(f's_add_u32 s80, s80, {d}'); A('s_addc_u32 s81, s81, 0')
            for i in range(8):
                if o.stouch == 1: A(f's_load_dword s83, s[80:81], {i*10240}')
                elif o.stouch == 2: A(f's_load_dwordx2 s[84:85], s[80:81], {i*10240 + 60}')
                else:
                    A(f's_load_dword s83, s[80:81], {i*10240}'); A(f's_load_dword s83, s[80:81], {i*10240 + 64}')
        issued = []
        TR = (lambda: self.tr(30)) if not o.stouch else (lambda: None)
        self.tri = 0
        def dma(txt):
            if not o.nodma: A(txt)
        xseq = [0]; wseq = [0]
        def x_half(X, second, wrap=False):
            assert xseq[0] == 2*X + int(second), (xseq, X, second); xseq[0] += 1
            if wrap and o.mrot and not second:
                A('s_cmp_eq_u32 s46, s64'); A('s_cselect_b32 s46, s65, s46')
            n = (8 - o.xsplit) if second else o.xsplit
            if X < o.xsfrom: n = 4
            A('s_mov_b32 m0, s41')
            A('s_addk_i32 s41, %d' % (n*0x1000))
            for i in range(n):
                dma(f'buffer_load_dwordx4 v10, s[32:35], s46 offen {o.xaux} lds')
                issued.append(('x', X))
                if i < n - 1: A('s_addk_i32 m0, 0x1000')
                A('s_addk_i32 s46, %d' % (1280 if not (second and i == n - 1) else 1280 - 10240 + 128))
            if second:
                A('s_sub_u32 s44, s41, s51'); A('s_cselect_b32 s41, s41, s44')
        def w_step(t, wrap=False):
            assert wseq[0] == t, (wseq, t); wseq[0] += 1
            if wrap and o.mrot:
                A('s_cmp_eq_u32 s47, s66'); A('s_cselect_b32 s47, s27, s47')
            A('s_add_u32 m0, s42, s43')
            A('s_add_u32 s43, s43, s48')
            for j in range(4):
                dma(f'buffer_load_dwordx4 v{11+j}, s[36:39], s47 offen {o.waux} lds')
                issued.append(('w', t))
                if j < 3:
                    A('s_addk_i32 m0, 0x1000')
                    A('s_and_b32 s43, s43, s50' if j == 0 else 's_nop 0')
            A('s_add_u32 s47, s47, s49')
        tstate = [0]; tfirst = [0, 0, 0]
        def touch(ch, wrap=False):
            if not o.touch: return
            if ch > 9 and (o.dbg == 2 or o.unroll_p): return
            for _ in range(ch - tstate[0]): A('s_add_u32 s53, s53, s55')
            if wrap and o.mrot:
                A('s_cmp_eq_u32 s53, s67'); A('s_cselect_b32 s53, s26, s53')
            tstate[0] = ch
            if o.wmode == 2 and not tfirst[0]:
                tfirst[0] = 1
                if ch: A(f's_cmp_eq_u32 s54, -1'); A('s_cselect_b32 s52, s53, 0')
                A(f'buffer_load_dword v21, v19, s[56:59], s52 offen')
            else:
                if o.wmode == 2 and ch >= o.tw0 and not tfirst[1]:
                    tfirst[1] = 1; A('s_and_b32 s53, s53, s54')
                if o.wmode == 2 and ch > o.tw1 and not tfirst[2]:
                    tfirst[2] = 1; A('s_not_b32 s70, s54'); A('s_or_b32 s53, s53, s70')
                A(f'buffer_load_dword v21, v20, s[56:59], s53 offen')
            issued.append(('t', ch))
        def need(step):
            req = [i for i, tg in enumerate(issued) if tg == ('x', step >> 1) or tg == ('w', step)]
            return len(issued) - 1 - max(req)
        def dummyh(frac):
            n = 20 // frac
            for i in range(0, n, 2): A(f'v_pk_fma_f32 v[{70+i}:{71+i}], v[{100+i}:{101+i}], v[{120}:{121}], v[{122}:{123}]')
            for i in range(n): A(f'v_exp_f32 v{130+i}, v{70+i}')
            for i in range(0, n, 2): A(f'v_pk_fma_f32 v[{130+i}:{131+i}], v[{130+i}:{131+i}], v[{120}:{121}], v[{120}:{121}]')
            for i in range(n): A(f'v_rcp_f32 v{130+i}, v{130+i}')
            for i in range(0, n, 2): A(f'v_pk_mul_f32 v[{70+i}:{71+i}], v[{70+i}:{71+i}], v[{130+i}:{131+i}]')
            for i in range(0, n, 2): A(f'v_cvt_pk_bf16_f32 v{150+i//2}, v{70+i}, v{71+i}')
        def sync(t):
            if o.pspread and t >= 19 - o.pspread * o.pskip: dummyh(o.pspread)
            TR()
            n = need(t + 2) if t + 2 < NSTEP else None
            if n is not None: A(f's_waitcnt vmcnt({n})')
            TR()
            if not (o.nobar and t >= o.nobar - 1): A('s_barrier')
            return n
        TR()
        def do(item):
            if item[0] == 't': setup_t()
            if item[0] == 'w': setup_w()
            setup_k()
            if item[0] == 'z':
                setup_w(); return
            if item[0] == 'y':
                A('s_waitcnt vmcnt(0)'); A('s_barrier'); return
            if item[0] == 'w': w_step(int(item[1:]))
            elif item[0] == 'x': x_half(int(item[1:-1]), item[-1] == 'b')
            elif item[0] == 't': touch(int(item[1:]))
            elif item[0] == 's': stouch(int(item[1:]))
        early = {}
        for part in o.early.split(';'):
            k, v = part.split(':'); early[int(k)] = [e for e in v.split(',') if e]
        for it in range(-2, 2*o.d0):
            for e in early.get(it, []): do(e)
            if it == -2: self.store_addr()
            sync(it)
        if o.dbg == 2 or o.unroll_p:
            for D in range(o.d0, 7):
                w_step(2*D + 3 + o.wa, True); x_half(D + 2, 0, True)
                if not o.todd and o.tl and not o.tc: (stouch(D + o.tl) if o.stouch else touch(D + o.tl, True))
                for e in early.get(2*D, []): do(e)
                sync(2*D)
                w_step(2*D + 4 + o.wa, True); x_half(D + 2, 1, True)
                if o.todd: touch(D + o.tl, True)
                sync(2*D + 1)
        else:
            A(f's_movk_i32 s45, {7 - o.d0}')
            self.lab('L_ploop')
            mark = len(self.L); ns = []
            for D in range(o.d0, 7):
                if D == o.d0 + 1: body_end = len(self.L)
                w_step(2*D + 3 + o.wa, True); x_half(D + 2, 0, True)
                if not o.todd and o.tl and not o.tc: touch(D + o.tl, True)
                a = sync(2*D)
                w_step(2*D + 4 + o.wa, True); x_half(D + 2, 1, True)
                if o.todd: touch(D + o.tl, True)
                b = sync(2*D + 1)
                ns.append((a, b))
            if len(set(ns)) != 1:
                mn = (min(a for a, b in ns), min(b for a, b in ns))
                sys.stderr.write(f'loop vmcnt variants {ns} -> {mn}\n')
            body = self.L[mark:body_end]
            mn = (min(a for a, b in ns), min(b for a, b in ns))
            it = iter(mn)
            body = [f'  s_waitcnt vmcnt({next(it)})' if l.strip().startswith('s_waitcnt vmcnt') else l for l in body]
            self.L = self.L[:mark] + body
            A('s_sub_u32 s45, s45, 1'); A('s_cmp_lg_u32 s45, 0'); A('s_cbranch_scc1 L_ploop')
        w_step(17 + o.wa); x_half(9, 0); sync(14)
        w_step(18 + o.wa); x_half(9, 1); sync(15)
        if not o.wa: w_step(19)
        def dummy(nph):
            for _ in range(nph):
                for i in range(0, 20, 2): A(f'v_pk_fma_f32 v[{70+i}:{71+i}], v[{100+i}:{101+i}], v[{120}:{121}], v[{122}:{123}]')
                for i in range(20): A(f'v_exp_f32 v{130+i}, v{70+i}')
                for i in range(0, 20, 2): A(f'v_pk_fma_f32 v[{130+i}:{131+i}], v[{130+i}:{131+i}], v[{120}:{121}], v[{120}:{121}]')
                for i in range(20): A(f'v_rcp_f32 v{130+i}, v{130+i}')
                for i in range(0, 20, 2): A(f'v_pk_mul_f32 v[{70+i}:{71+i}], v[{70+i}:{71+i}], v[{130+i}:{131+i}]')
                for i in range(0, 20, 2): A(f'v_cvt_pk_bf16_f32 v{150+i//2}, v{70+i}, v{71+i}')
        if o.pvalu >= 1: dummy(1)
        sync(16)
        if o.pvalu >= 2: dummy(1)
        sync(17)
        if o.pvalu >= 3: dummy(1)
        sync(18)
        if o.stouch: A('s_waitcnt lgkmcnt(0)')
        phases = self.phases()
        nrow = 0
        for ph, rows in enumerate(phases):
            A('s_barrier')
            aux = o.saux if ph < len(phases) - o.plain else o.saux2
            items = []
            for s_ in rows:
                D = 40 + 8*(nrow % 4); nrow += 1
                for j in range(2):
                    A(f'ds_read_b128 v[{D+4*j}:{D+4*j+3}], v{22+j} offset:{s_*32*ORS}')
                    items.append((D + 4*j, j, s_))
            for i, (D, j, s_) in enumerate(items if not o.nostore else []):
                A(f's_waitcnt lgkmcnt({len(items) - 1 - i})')
                off = (s_ % 4)*1280
                A(f'buffer_store_dwordx4 v[{D}:{D+3}], v{26+j}, s[72:75], s{76 + (s_ >> 2)} offen {("offset:%d" % off) if off else ""} {aux}')
        if o.dbg == 2 and not o.stouch:
            A('s_waitcnt vmcnt(0)'); TR(); self.tr_end(30, 1)
        self.lab('L_exit')
        A('s_endpgm')

    def store_addr(self):
        A = self.A
        A('s_mov_b32 s72, s16'); A('s_and_b32 s73, s17, 0xffff'); A('s_mov_b32 s74, s34'); A('s_mov_b32 s75, s35')
        A('s_add_u32 s76, s26, s27'); A('s_add_u32 s77, s76, 5120')
        A(f's_mul_i32 s78, s23, {8*ORS}'); A('s_mul_i32 s79, s23, 81920')
        for j in range(2):
            A(f'v_add_u32 v3, {64*j}, v0')
            if j == 1: A('v_min_u32 v3, 79, v3')
            self.div10(4, 5, 3)
            A(f'v_mul_u32_u24 v6, {ORS}, v4')
            A(f'v_lshl_add_u32 v6, v5, 4, v6')
            A(f'v_add_u32 v{22+j}, s78, v6')
            A(f'v_mul_u32_u24 v6, 10240, v4')
            A(f'v_lshl_add_u32 v6, v5, 4, v6')
            A(f'v_add_u32 v{26+j}, s79, v6')
        A('v_cmp_gt_u32 vcc, 16, v0')
        A('v_mov_b32 v7, 0x40000000')
        A('s_nop 0')
        A('v_cndmask_b32 v27, v7, v27, vcc')

    def phases(self):
        return [[int(x) for x in p.split(',')] for p in self.opt.phases.split('|')]

    def mfma_list(self, hi):
        out = []
        for s_in in range(8):
            for k in range(3):
                s_out = s_in + 1 - k
                if not 0 <= s_out < 8: continue
                out.append((s_out, (k, 0), s_in))
                out.append((8 + s_out, (k, 1), s_in))
                if (not hi and s_out < 4): out.append((16 + s_out, (k, 2), s_in))
                if (hi and s_out >= 4): out.append((16 + s_out - 4, (k, 2), s_in))
        assert len(out) == 55
        od = self.opt.order
        sval = lambda b: (b % 8) if b < 16 else (b - 16 + (4 if hi else 0))
        if od == 2: out.sort(key=lambda e: (e[0], e[1][0]))
        elif od == 3: out.sort(key=lambda e: (sval(e[0]), e[1][1], e[1][0]))
        elif od == 5: out.sort(key=lambda e: (e[0], -e[1][0]) if e[0] % 2 else (e[0], e[1][0]))
        elif od == 6: out.sort(key=lambda e: (e[1][1], sval(e[0]), e[1][0] if sval(e[0]) % 2 == 0 else -e[1][0]))
        return out
    def ncols(self, hi): return [3, 4, 2] if hi else [0, 1, 2]
    def reads(self, step, hi):
        st = step & 1
        xs = (step >> 1) % NXS; kk = step & 1; ws = step % NWS
        nc = self.ncols(hi)
        xr = []
        for s in range(8):
            va = (V_XA if xs < 2 else V_XB)[kk]
            off = (xs*XSLOT if xs < 2 else 0) + s*4096
            d = SETX[st] + 4*s
            xr.append(f'ds_read_b128 v[{d}:{d+3}], v{va} offset:{off}')
        wr = []
        for k in range(3):
            for g in range(3):
                for u in range(2):
                    d = SETW[st] + (k*3 + g)*4 + 2*u
                    off = ws*WSLOT + k*5120 + u*2560 + nc[g]*32
                    wr.append(f'ds_read_b64_tr_b16 v[{d}:{d+1}], v{V_W} offset:{off}')
        r = []
        while xr or wr:
            if wr: r.append(wr.pop(0))
            if wr: r.append(wr.pop(0))
            if xr: r.append(xr.pop(0))
        return r
    def params_code(self):
        M, V, G, B = V_RAW, V_RAW+1, V_RAW+2, V_RAW+3
        c = ['s_waitcnt vmcnt(0)']
        for r in (M, V, G, B): c.append(f'v_lshlrev_b32 v{r}, 16, v{r}')
        c += [f'v_add_f32 v{V}, 0x3727c5ac, v{V}', f'v_rsq_f32 v{V}, v{V}', f'v_mul_f32 v{G}, 0xbfb8aa3b, v{G}',
              f'v_mul_f32 v{B}, 0xbfb8aa3b, v{B}', f'v_mul_f32 v{V_RAW+4}, v{G}, v{V}', f'v_fma_f32 v{V_RAW+5}, -v{M}, v{V_RAW+4}, v{B}']
        return c

    def consumer(self, hi):
        A = self.A; o = self.opt
        tag = 'hi' if hi else 'lo'
        start = len(self.L)
        self.lab(f'L_cons_{tag}')
        nc = self.ncols(hi)
        A('s_lshr_b32 s28, s23, 1')
        A('v_and_b32 v1, 15, v0')
        A('v_lshrrev_b32 v2, 4, v0')
        A('v_lshrrev_b32 v3, 1, v1')
        A('v_xor_b32 v3, v3, v2')
        A('v_lshlrev_b32 v3, 4, v3')
        A('v_lshl_add_u32 v3, v1, 7, v3')
        A('s_lshl_b32 s29, s28, 11')
        A(f'v_add_u32 v{V_XA[0]}, s29, v3')
        A(f'v_xor_b32 v{V_XA[1]}, 64, v{V_XA[0]}')
        A(f'v_add_u32 v{V_XB[0]}, 0x10000, v{V_XA[0]}')
        A(f'v_add_u32 v{V_XB[1]}, 0x10000, v{V_XA[1]}')
        A('v_lshrrev_b32 v3, 2, v1')
        A('v_lshl_add_u32 v3, v2, 2, v3')
        A('v_mul_u32_u24 v3, 160, v3')
        A('v_and_b32 v4, 3, v1')
        A('v_lshl_add_u32 v3, v4, 3, v3')
        A(f'v_add_u32 v{V_W}, {WBASE}, v3')
        A('s_lshl_b32 s29, s28, 4')
        A('v_add_u32 v3, s29, v1')
        A(f'v_mul_u32_u24 v3, {ORS}, v3')
        A(f'v_lshl_add_u32 v{V_OUT}, v2, 3, v3')
        A(f'v_lshlrev_b32 v3, 4, v2'); A(f'v_add_u32 v{V_PA}, {PB}, v3')
        A('v_min_u32 v3, 19, v0'); A('s_mul_i32 s29, s23, 20'); A('v_add_u32 v3, s29, v3')
        A(f'v_lshlrev_b32 v4, 2, v3'); A(f'v_add_u32 v{V_PW}, {PB}, v4')
        tcs = {}
        if o.tc:
            for e in o.tcs.split(','):
                p_, c_ = e.split(':'); tcs.setdefault(p_, []).append(int(c_))
            A('s_lshl_b32 s29, s23, 3'); A('v_add_u32 v3, s29, v0'); A('v_mul_u32_u24 v3, 10240, v3')
            A('s_mul_i32 s29, s21, 1280'); A('v_add_u32 v3, s29, v3')
            A('v_cmp_gt_u32 vcc, 8, v0'); A('v_mov_b32 v4, 0x40000000')
            A('s_mov_b32 s40, s4'); A('s_and_b32 s41, s5, 0xffff'); A(f's_mov_b32 s42, {XBYTES}'); A('s_mov_b32 s43, 0x20000')
            A('v_cndmask_b32 v169, v4, v3, vcc')
            A('s_mov_b32 s44, s26')
        cpos = [0]; nissued = [0]
        def ct(ch):
            r = []
            d = (ch - cpos[0]) * 128; cpos[0] = ch
            if d: r.append(f's_addk_i32 s44, {d}')
            r.append('buffer_load_dword v170, v169, s[40:43], s44 offen')
            nissued[0] += 1
            return r
        for ch in tcs.get('S', []):
            for ins in ct(ch): A(ins)
        if o.pads:
            A('s_cmp_eq_u32 s28, 0'); A(f's_cbranch_scc1 L_pad_{tag}_1')
            A('s_cmp_eq_u32 s28, 1'); A(f's_branch L_pad_{tag}_3')
            self.lab(f'L_warm_{tag}')
        if o.prio: A(f's_setprio {o.prio}')
        A('s_cmp_lg_u32 s2, s2')
        TR = lambda: self.tr(V_TRC)
        self.tri = 0
        if ',y' in o.early: A('s_barrier')
        TR()
        A('s_barrier')
        TR(); self.sp('Bm1')
        for ch in tcs.get('M', []):
            for ins in ct(ch): A(ins)
            A('s_cmp_lg_u32 s2, s2')
        for r in self.reads(0, hi): A(r)
        A('s_waitcnt lgkmcnt(0)')
        if not o.b0late:
            A('s_barrier')
            TR(); self.sp('B0')
        ml = self.mfma_list(hi)
        for t in range(NSTEP):
            st = t & 1
            self.raw(f'; step {t}')
            fill = self.reads(t + 1, hi) if t + 1 < NSTEP else []
            span = o.rdspan
            extra = {}
            nbefore = nissued[0]
            for ch in tcs.get(str(t), []):
                extra.setdefault(o.tcpos, []).extend(ct(ch) + ['s_cmp_lg_u32 s2, s2'])
            if t == o.pstep:
                pc = self.params_code()
                pc[0] = f's_waitcnt vmcnt({nbefore})'
                for i, ins in enumerate(pc): extra.setdefault(1 + 4*i, []).append(ins)
            if t == 17:
                extra.setdefault(50, []).append(f'ds_write_b32 v{V_PW}, v{V_RAW+4}')
                extra.setdefault(51, []).append(f'ds_write_b32 v{V_PW}, v{V_RAW+5} offset:320')
            if t == NSTEP - 1:
                fill = []
                for g in range(3):
                    fill.append(f'ds_read_b128 v[{E_SC+4*g}:{E_SC+4*g+3}], v{V_PA} offset:{nc[g]*64}')
                    fill.append(f'ds_read_b128 v[{E_SH+4*g}:{E_SH+4*g+3}], v{V_PA} offset:{320 + nc[g]*64}')
                fill += [f'v_mov_b32 v{E_C}, 0xbfb8aa3b', f'v_mov_b32 v{E_C+1}, 0xbfb8aa3b']
                span = 30
            seen = set(); ri = 0
            for mi, (blk, (k, g), s_in) in enumerate(ml):
                a = ACC + 4*blk
                w = SETW[st] + (k*3 + g)*4; x = SETX[st] + 4*s_in
                c = f'v[{a}:{a+3}]'
                if t == 0 and blk not in seen: c = '0'
                seen.add(blk)
                if o.agpr:
                    aa = 4*blk
                    cc = '0' if c == '0' else f'a[{aa}:{aa+3}]'
                    A(f'v_mfma_f32_16x16x32_bf16 a[{aa}:{aa+3}], v[{w}:{w+3}], v[{x}:{x+3}], {cc}')
                    due = 0
                    if t == 0 and o.b0late:
                        if mi == o.b0late - 1:
                            A('s_barrier'); TR(); self.sp('B0')
                        due = max(0, mi + 1 - o.b0late) * len(fill) // (50 - o.b0late)
                    else:
                        due = (mi + 1) * len(fill) // span if fill else 0
                    while ri < min(due, len(fill)):
                        A(fill[ri]); ri += 1
                    for ins in extra.get(mi, []): A(ins)
                    continue
                if o.swapab: A(f'v_mfma_f32_16x16x32_bf16 v[{a}:{a+3}], v[{x}:{x+3}], v[{w}:{w+3}], {c}')
                else: A(f'v_mfma_f32_16x16x32_bf16 v[{a}:{a+3}], v[{w}:{w+3}], v[{x}:{x+3}], {c}')
                if t == 0 and o.b0late:
                    if mi == o.b0late - 1:
                        A('s_barrier'); TR(); self.sp('B0')
                    due = max(0, mi + 1 - o.b0late) * len(fill) // (50 - o.b0late)
                else:
                    due = (mi + 1) * len(fill) // span if fill else 0
                while ri < min(due, len(fill)):
                    A(fill[ri]); ri += 1
                for ins in extra.get(mi, []): A(ins)
            assert ri == len(fill)
            if t + 1 < NSTEP:
                A('s_waitcnt lgkmcnt(0)')
                if not (o.nobar and t >= o.nobar - 1): A('s_barrier')
                TR(); self.sp(f'B{t+1}')
        TR(); self.sp('lend')
        if o.dbg == 4: A('s_memtime s[84:85]')
        for _ in range(o.epial): A('s_nop 0')
        A('s_waitcnt lgkmcnt(0)')
        last = {blk: i for i, (blk, _, _) in enumerate(ml)}
        first_rows = self.phases()[0]
        for s_ in first_rows:
            for g in range(3):
                if g == 2 and ((s_ >= 4) != hi): continue
                b_ = (g*8 + s_) if g < 2 else 16 + (s_ - 4 if hi else s_)
                assert len(ml) - 1 - last[b_] >= 8, (b_, last[b_])
        self.raw('; @align8')
        phases = self.phases()
        def blocks_of(s_, h_):
            r = []
            for g in range(3):
                if g == 2 and ((s_ >= 4) != h_): continue
                r.append(((g*8 + s_) if g < 2 else 16 + (s_ - 4 if h_ else s_), g, s_))
            return r
        seq = [b for rows in phases for s_ in rows for b in blocks_of(s_, hi)]
        cum = []; lo_c = hi_c = 0
        for rows in phases:
            lo_c += sum(len(blocks_of(s_, False)) for s_ in rows); hi_c += sum(len(blocks_of(s_, True)) for s_ in rows)
            cum.append(max(lo_c, hi_c))
        prev = 0
        for ph, c_ in enumerate(cum):
            blks = seq[prev:c_]; prev = c_
            n = 4*len(blks)
            assert n <= 20
            for bi, (blk, g, s) in enumerate(blks):
                a = ACC + 4*blk; U = E_U + 4*bi; sc = E_SC + 4*g; sh = E_SH + 4*g
                for p in (0, 2): A(f'v_pk_fma_f32 v[{U+p}:{U+p+1}], v[{a+p}:{a+p+1}], v[{sc+p}:{sc+p+1}], v[{sh+p}:{sh+p+1}]')
            for i in range(n): A(f'v_exp_f32 v{E_E+i}, v{E_U+i}')
            if ph > 0:
                A('s_waitcnt lgkmcnt(0)'); A('s_barrier'); TR()
            for i in range(0, n, 2): A(f'v_pk_fma_f32 v[{E_E+i}:{E_E+i+1}], v[{E_E+i}:{E_E+i+1}], v[{E_C}:{E_C+1}], v[{E_C}:{E_C+1}]')
            for i in range(n): A(f'v_rcp_f32 v{E_E+i}, v{E_E+i}')
            for i in range(0, n, 2): A(f'v_pk_mul_f32 v[{E_U+i}:{E_U+i+1}], v[{E_U+i}:{E_U+i+1}], v[{E_E+i}:{E_E+i+1}]')
            for bi, (blk, g, s) in enumerate(blks):
                U = E_U + 4*bi; F = E_F + 2*bi
                A(f'v_cvt_pk_bf16_f32 v{F}, v{U}, v{U+1}')
                A(f'v_cvt_pk_bf16_f32 v{F+1}, v{U+2}, v{U+3}')
                A(f'ds_write_b64 v{V_OUT}, v[{F}:{F+1}] offset:{s*32*ORS + nc[g]*32}')
        A('s_waitcnt lgkmcnt(0)'); A('s_barrier'); TR()
        if o.dbg == 4:
            A('s_memtime s[86:87]'); A('s_waitcnt lgkmcnt(0)')
            A(f'v_writelane_b32 v{V_TRC}, s84, 0'); A(f'v_writelane_b32 v{V_TRC}, s86, 1')
            A(f's_cmp_eq_u32 s23, {0 if not hi else 1}'); A(f's_cbranch_scc0 L_d4_{tag}')
            A('v_mbcnt_lo_u32_b32 v2, -1, 0'); A('v_mbcnt_hi_u32_b32 v2, -1, v2')
            A(f's_lshl_b32 s44, s2, 9'); A(f's_add_u32 s44, s44, {262144 + (256 if hi else 0)}')
            A('v_lshl_add_u32 v2, v2, 2, s44')
            A(f'global_store_dword v2, v{V_TRC}, s[62:63]')
            self.lab(f'L_d4_{tag}')
        self.tr_end(V_TRC, 0)
        self.sp('E3')
        if o.spinpt:
            A('s_cmp_eq_u32 s2, 0'); A(f's_cbranch_scc0 L_end_{tag}')
            A('s_cmp_eq_u32 s23, 0'); A(f's_cbranch_scc0 L_end_{tag}')
            A('s_waitcnt lgkmcnt(0)')
            A('s_sub_u32 s44, s92, s60'); A(f's_mul_i32 s44, s44, {o.spinm}')
            self.lab(f'L_spin_{tag}')
            A('s_memrealtime s[66:67]'); A('s_waitcnt lgkmcnt(0)')
            A('s_sub_u32 s45, s66, s60'); A('s_cmp_lt_u32 s45, s44'); A(f's_cbranch_scc1 L_spin_{tag}')
        self.lab(f'L_end_{tag}')
        A('s_endpgm')
        body = self.L[start:]
        sizes = isizes(body)
        out = []; off = 0; page = 1
        total = sum(sizes)
        npages = (total + 4*8 + 4095) // 4096
        for l, sz in zip(body, sizes):
            if o.pads and off >= page*4096 and sz and page <= 3:
                nxt = f'L_pad_{tag}_2' if page == 1 else f'L_warm_{tag}'
                out.append(f'L_pad_{tag}_{page}:'); out.append(f'  s_cbranch_scc1 {nxt}')
                off += 4; page += 1
            if l.startswith('; @align8'):
                if off % 8 == 4 and not o.noalign:
                    out.append('  s_nop 0'); off += 4
                continue
            out.append(l); off += sz
        if o.pads:
            assert page == 4, f'expected 4 pages, got {page} (size {off})'
            assert off <= 4*4096 + (4096 if o.dbg or o.spinpt else 0), off
        self.L = self.L[:start] + out
        self.sizes[tag] = off

    def build(self):
        o = self.opt; R = self.raw
        self.sizes = {}
        R(HEADER.rstrip('\n'))
        R(f'; @launch grid=(256,1,1) block=(512,1,1) lds={LDS_BYTES}')
        R(DOC)
        R('.amdgcn_target "amdgcn-amd-amdhsa--gfx950"'); R('.text'); R(f'.globl {NAME}'); R('.p2align 8'); R(f'.type {NAME},@function')
        self.lab(NAME)
        s0 = len(self.L)
        self.entry()
        self.producer()
        A = self.A
        self.lab('L_cons_sel')
        A('s_sub_u32 s23, s23, 4')
        A('v_min_u32 v3, 19, v0'); A('s_mul_i32 s29, s23, 20'); A('v_add_u32 v3, s29, v3')
        A('v_lshlrev_b32 v3, 1, v3'); A('v_add_u32 v3, s27, v3')
        A('s_waitcnt lgkmcnt(0)')
        for i, sp in enumerate([8, 10, 12, 14]):
            A(f'global_load_ushort v{V_RAW+i}, v3, s[{sp}:{sp+1}]')
        A('s_bitcmp1_b32 s23, 0'); A('s_cbranch_scc1 L_cons_hi'); A('s_branch L_cons_lo')
        self.sizes['prod'] = sum(isizes(self.L[s0:]))
        R('.p2align 12')
        self.consumer(False)
        R('.p2align 12')
        self.consumer(True)
        R('.section .rodata,"a"'); R('.p2align 6'); R(f'.amdhsa_kernel {NAME}')
        R('  .amdhsa_next_free_vgpr 256'); R('  .amdhsa_next_free_sgpr 96'); R('  .amdhsa_accum_offset %d' % (176 if o.agpr else 256))
        R('  .amdhsa_group_segment_fixed_size 0'); R('  .amdhsa_kernarg_size 72'); R('  .amdhsa_user_sgpr_count 2')
        R('  .amdhsa_user_sgpr_kernarg_segment_ptr 1'); R('  .amdhsa_system_sgpr_workgroup_id_x 1'); R('.end_amdhsa_kernel')
        sys.stderr.write(f'sizes: {self.sizes}\n')
        return '\n'.join(self.L) + '\n'

def parse(argv):
    p = argparse.ArgumentParser()
    p.add_argument('-o', default='standalone__batchnorm__sampling.s')
    for k, v in dict(dbg=0, rdspan=48, nodma=0, touch=1, t0=3, prio=0, meta=0, pads=1, pstep=8, unroll_p=0, spinm=20, cyc=0, b0late=20, wmode=1, tl=3, wa=0, swapab=0, order=5, pvalu=0, pspread=0, pskip=0, mrot=0, stouch=0, todd=0, xmulti=0, nostore=0, lazy=1, xsplit=4, xsfrom=4, tw0=3, tw1=99, nobar=0, epial=0, noalign=0, agpr=0, tc=0, tcpos=50).items():
        p.add_argument('--' + k, type=int, default=v)
    p.add_argument('--spinpt', default='')
    p.add_argument('--phases', default='0,4|1,5|2,6|3,7'); p.add_argument('--plain', type=int, default=1)
    p.add_argument('--tcs', default='S:1,S:2,M:3,1:4,4:5,6:6,8:7,10:8,12:9')
    p.add_argument('--early', default='-2:x0a,t0,x0b,w0,t1,t2,w1;-1:x1a,x1b,w2,t3;0:w3,x2a;1:w4,x2b,t4;2:w5,x3a;3:w6,x3b')
    p.add_argument('--d0', type=int, default=2)
    p.add_argument('--xaux', default=''); p.add_argument('--waux', default=''); p.add_argument('--saux', default='nt'); p.add_argument('--saux2', default=''); p.add_argument('--sauxn', type=int, default=3)
    return p.parse_args(argv)

from gen import META
if __name__ == '__main__':
    o = parse(sys.argv[1:])
    s = Gen(o).build()
    if o.meta: s += META.format(name=NAME)
    open(o.o, 'w').write(s)
```
